```python
import torch

def _softmax(x, axis=-1):
    return torch.softmax(x, dim=axis)

def _gelu(x):
    return torch.nn.functional.gelu(x, approximate='tanh')

def _silu(x):
    return torch.nn.functional.silu(x)

def _sigmoid(x):
    return torch.sigmoid(x)

def _layernorm(x, axis=-1, eps=1e-05):
    m = x.mean(dim=axis, keepdim=True)
    v = x.var(dim=axis, keepdim=True, unbiased=False)
    return (x - m) / torch.sqrt(v + eps)

def _scatter_add(tgt, idx, src, axis=0):
    return tgt.clone().index_add_(axis, idx, src)

def _segment_sum(src, seg, n):
    out = torch.zeros((n,) + src.shape[1:], dtype=src.dtype)
    return out.index_add_(0, seg, src)

def _pad(x, pw):
    flat = tuple((v for pair in reversed(pw) for v in pair))
    return torch.nn.functional.pad(x, flat)
kernel_name = 'sequential_preLN__spectral_gfnet__mixer_gmlp__prompt'

def setup_inputs():

    _w = lambda a: (lambda t: t.to(torch.bfloat16) if t.is_floating_point() else t)(torch.as_tensor(a))

    def _A_setup():
        B, S, D = (1, 2048, 640)
        Df = D // 2 + 1
        return {'x': _w((lambda *s: torch.randn(*s, dtype=torch.bfloat16) * 0.05)(B, S, D)), 'w_r': _w((lambda *s: torch.randn(*s, dtype=torch.bfloat16) * 0.4)(S, Df) * 0.02), 'w_i': _w((lambda *s: torch.randn(*s, dtype=torch.bfloat16) * 0.4)(S, Df) * 0.02)}
    _A_in = _A_setup()

    def _B_setup():
        B, S, D, F = (1, 2048, 640, 1728)
        Fh = F // 2
        return {'x': _w((lambda *s: torch.randn(*s, dtype=torch.bfloat16) * 0.05)(B, S, D)), 'w_in': _w((lambda *s: torch.randn(*s, dtype=torch.bfloat16) * 0.4)(D, 2 * Fh)), 'w_sp': _w(0.01 * (lambda *s: torch.randn(*s, dtype=torch.bfloat16) * 0.4)(S, S)), 'b_sp': _w(1.0 + 0.01 * (lambda *s: torch.randn(*s, dtype=torch.bfloat16) * 0.05)(S)), 'w_out': _w((lambda *s: torch.randn(*s, dtype=torch.bfloat16) * 0.05)(Fh, D))}
    _B_in = _B_setup()
    return {'A_x': _A_in['x'], 'A_w_r': _A_in['w_r'], 'A_w_i': _A_in['w_i'], 'B_x': _B_in['x'], 'B_w_in': _B_in['w_in'], 'B_w_sp': _B_in['w_sp'], 'B_b_sp': _B_in['b_sp'], 'B_w_out': _B_in['w_out']}

def reference(A_x, A_w_r, A_w_i, B_x, B_w_in, B_w_sp, B_b_sp, B_w_out):

    def _A_ref(x, w_r, w_i):
        B, S, D = x.shape
        X = (lambda x, axes=(-2, -1): torch.fft.rfft2(x.float(), dim=axes))(x, axes=(-2, -1))
        W = w_r + 1j * w_i
        X = X * W
        y = (lambda x, s, axes=(-2, -1): torch.fft.irfft2(x, s=s, dim=axes).to(torch.bfloat16))(X, (S, D), axes=(-2, -1))
        return y

    def _B_ref(x, w_in, w_sp, b_sp, w_out):
        B, S, D = x.shape
        F = w_in.shape[-1]
        Fh = F // 2
        z = _gelu(torch.einsum('bsd,df->bsf', x, w_in))
        z1 = z[..., :Fh].clone()
        z2 = _layernorm(z[..., Fh:], axis=-1)
        g = torch.einsum('ts,bsf->btf', w_sp, z2) + b_sp[None, :, None]
        return torch.einsum('bsf,fd->bsd', z1 * g, w_out)
    x = A_x
    h = x + _A_ref(_layernorm(x, axis=-1), A_w_r, A_w_i)
    h2 = h + _B_ref(_layernorm(h, axis=-1), B_w_in, B_w_sp, B_b_sp, B_w_out)
    return h2
```

```python
import re

REG_RE = re.compile(r"^(-?)(abs\()?([vas])(\d+|\[(\d+):(\d+)\])\)?$")

TRANS = ("v_exp_f32", "v_log_f32", "v_rcp_f32", "v_rsq_f32", "v_sqrt_f32", "v_sin_f32", "v_cos_f32")


def parse_reg(tok):
    tok = tok.strip()
    if tok in ("vcc",):
        return [("s", 106), ("s", 107)]
    if tok == "vcc_lo":
        return [("s", 106)]
    if tok == "exec":
        return [("s", 126), ("s", 127)]
    if tok == "m0":
        return [("s", 124)]
    m = REG_RE.match(tok)
    if not m:
        return []
    kind = m.group(3)
    if m.group(5) is not None:
        return [(kind, i) for i in range(int(m.group(5)), int(m.group(6)) + 1)]
    return [(kind, int(m.group(4)))]


def split_ops(s):
    out, depth, cur = [], 0, ""
    for ch in s:
        if ch in "[(":
            depth += 1
        if ch in "])":
            depth -= 1
        if ch == "," and depth == 0:
            out.append(cur.strip())
            cur = ""
        else:
            cur += ch
    if cur.strip():
        out.append(cur.strip())
    return out


def mfma_passes(mn):
    if "32x32x16" in mn or "32x32x8" in mn:
        return 8
    if "16x16x32" in mn or "16x16x16" in mn:
        return 4
    raise ValueError(mn)


class Kern:
    def __init__(self, name):
        self.name = name
        self.lines = []
        self.pos = 0
        self.reset_state()
        self.maxv = -1
        self.maxa = -1
        self.maxs = -1
        self.vm = []
        self.tag = None
        self.lg = []

    def wait(self, tag):
        idx = max(i for i, t in enumerate(self.vm) if t == tag)
        n = len(self.vm) - 1 - idx
        self.ins("s_waitcnt vmcnt(%d)" % min(n, 63))

    def waitl(self, tag):
        idx = max(i for i, t in enumerate(self.lg) if t == tag)
        n = len(self.lg) - 1 - idx
        self.ins("s_waitcnt lgkmcnt(%d)" % min(n, 15))

    def reset_state(self):
        self.valu_w = {}
        self.trans_w = {}
        self.opsel_w = {}
        self.mfma_w = {}
        self.mfma_c = {}
        self.valu_sw = {}
        self.salu_m0 = -100
        self.store_d = {}
        self.valu_exec = -100
        self.dot_w = {}

    def raw(self, s):
        self.lines.append(s)

    def comment(self, s):
        self.lines.append("    ; " + s)

    def label(self, l):
        self.settle()
        self.lines.append(l + ":")

    def settle(self):
        need = self.pos
        for r, (p, ps, _, _) in self.mfma_w.items():
            need = max(need, p + {4: 8, 8: 12}[ps] + 1)
        for r, (p, ps) in self.mfma_c.items():
            need = max(need, p + {4: 3, 8: 7}[ps] + 1)
        for d in (self.valu_w, self.trans_w, self.opsel_w, self.store_d):
            for r, p in d.items():
                need = max(need, p + 2 + 1)
        for r, p in self.dot_w.items():
            need = max(need, p + 3 + 1)
        for r, p in self.valu_sw.items():
            need = max(need, p + 5 + 1)
        need = max(need, self.salu_m0 + 2, self.valu_exec + 6)
        self._pad(need)
        self.reset_state()

    def _pad(self, need):
        while self.pos < need:
            n = min(need - self.pos, 16)
            self.lines.append("    s_nop %d" % (n - 1))
            self.pos += n

    def __call__(self, text):
        for t in text.strip().split("\n"):
            t = t.split(";")[0].strip()
            if t:
                self.ins(t)

    def ins(self, text):
        parts = text.split(None, 1)
        mn = parts[0]
        rest = parts[1] if len(parts) > 1 else ""
        ops = split_ops(rest)
        mods = ""
        if ops:
            last = ops[-1].split(None, 1)
            if len(last) > 1:
                ops[-1] = last[0]
                mods = last[1]
        regs = [parse_reg(o) for o in ops]
        for rl in regs:
            for k, i in rl:
                if k == "v":
                    self.maxv = max(self.maxv, i)
                elif k == "a":
                    self.maxa = max(self.maxa, i)
                elif k == "s" and i < 102:
                    self.maxs = max(self.maxs, i)
        is_mfma = mn.startswith("v_mfma")
        is_valu = mn.startswith("v_") and not is_mfma
        is_vmem = mn.startswith(("buffer_", "global_", "flat_"))
        is_ds = mn.startswith("ds_")
        is_salu = mn.startswith("s_")
        dpp = any(x in mods for x in ("row_", "quad_perm", "wave_"))
        writes, reads = [], []
        if is_mfma:
            writes = regs[0]
            reads = regs[1] + regs[2] + regs[3]
        elif is_valu:
            if mn.startswith("v_permlane") and "swap" in mn:
                writes = regs[0] + regs[1]
                reads = regs[0] + regs[1]
            elif mn.startswith(("v_add_co", "v_sub_co", "v_addc_co", "v_subb_co", "v_mad_u64")):
                writes = regs[0] + regs[1]
                reads = sum(regs[2:], [])
            else:
                writes = regs[0]
                reads = sum(regs[1:], [])
                if mn.startswith(("v_fmac", "v_fma_mixlo", "v_fma_mixhi", "v_dot2c", "v_writelane")) or dpp:
                    reads = reads + regs[0]
                if mn.startswith("v_cndmask") and len(ops) == 3:
                    reads = reads + parse_reg("vcc")
        elif is_vmem:
            if "load" in mn and " lds" not in (" " + mods) and "_lds_" not in mn:
                writes = regs[0]
                reads = sum(regs[1:], [])
            elif "atomic" in mn and ("sc0" in mods):
                writes = regs[0]
                reads = sum(regs, [])
            else:
                reads = sum(regs, [])
        elif is_ds:
            if mn.startswith(("ds_read", "ds_bpermute", "ds_permute", "ds_swizzle")):
                writes = regs[0]
                reads = sum(regs[1:], [])
            else:
                reads = sum(regs, [])
        elif is_salu:
            if mn.startswith(("s_cmp", "s_cbranch", "s_branch", "s_waitcnt", "s_barrier", "s_nop", "s_endpgm",
                              "s_sleep", "s_setprio", "s_bitcmp")):
                reads = sum(regs, [])
            else:
                writes = regs[0] if regs else []
                reads = sum(regs[1:], [])
        need = self.pos

        def req(p, n):
            nonlocal need
            need = max(need, p + n + 1)

        vreads = [r for r in reads if r[0] in "va"]
        vwrites = [r for r in writes if r[0] in "va"]
        sreads = [r for r in reads if r[0] == "s"]
        for r in vreads + vwrites:
            if r in self.dot_w:
                req(self.dot_w[r], 3)
        if is_mfma:
            ps = mfma_passes(mn)
            d = tuple(regs[0])
            for r in regs[1] + regs[2] + regs[3]:
                if r in self.valu_w:
                    req(self.valu_w[r], 2)
            for r in regs[1] + regs[2]:
                if r in self.mfma_w:
                    p, pps, _, _ = self.mfma_w[r]
                    req(p, {4: 8, 8: 12}[pps])
            for r in regs[3]:
                if r in self.mfma_w:
                    p, pps, dt, pmn = self.mfma_w[r]
                    if dt == tuple(regs[3]) and pps == ps:
                        pass
                    else:
                        req(p, {4: 6, 8: 10}[pps])
            for r in regs[0]:
                if r in self.mfma_w and r not in regs[3]:
                    p, pps, dt, pmn = self.mfma_w[r]
                    req(p, {4: 8, 8: 12}[pps])
            req(self.valu_exec, 4)
        else:
            for r in vreads + vwrites:
                if r in self.mfma_w:
                    p, pps, _, _ = self.mfma_w[r]
                    req(p, {4: 8, 8: 12}[pps])
            if is_valu:
                for r in vwrites:
                    if r in self.mfma_c:
                        p, pps = self.mfma_c[r]
                        req(p, {4: 3, 8: 7}[pps])
                    if r in self.store_d:
                        req(self.store_d[r], 2)
                for r in vreads:
                    if r in self.trans_w and mn not in TRANS:
                        req(self.trans_w[r], 1)
                    if r in self.opsel_w:
                        req(self.opsel_w[r], 1)
                    if dpp and r in self.valu_w:
                        req(self.valu_w[r], 2)
                    if mn.startswith("v_permlane") and r in self.valu_w:
                        req(self.valu_w[r], 2)
                    if mn.startswith(("v_readlane", "v_readfirstlane")) and r in self.valu_w:
                        req(self.valu_w[r], 1)
                for r in sreads:
                    if r in self.valu_sw:
                        req(self.valu_sw[r], 4 if mn.startswith(("v_readlane", "v_writelane")) else 2)
                if dpp:
                    req(self.valu_exec, 5)
            else:
                for r in vwrites:
                    if r in self.store_d:
                        req(self.store_d[r], 1)
            if is_vmem:
                for r in sreads:
                    if r in self.valu_sw:
                        req(self.valu_sw[r], 5)
                if " lds" in (" " + mods) or "_lds_" in mn:
                    req(self.salu_m0, 1)
        self._pad(need)
        p = self.pos
        if is_vmem:
            self.vm.append(self.tag)
        if is_ds:
            self.lg.append(self.tag)
        self.lines.append("    " + text)
        self.pos += 1
        if mn == "s_nop":
            self.pos += int(ops[0])
        for r in vwrites:
            for d in (self.valu_w, self.trans_w, self.opsel_w, self.mfma_w, self.dot_w):
                d.pop(r, None)
        if is_mfma:
            for r in regs[0]:
                self.mfma_w[r] = (p, mfma_passes(mn), tuple(regs[0]), mn)
            for r in regs[3]:
                self.mfma_c[r] = (p, mfma_passes(mn))
        elif is_valu:
            for r in vwrites:
                self.valu_w[r] = p
                if mn in TRANS:
                    self.trans_w[r] = p
                if mn.startswith("v_dot"):
                    self.dot_w[r] = p
                if mn.startswith(("v_fma_mixlo", "v_fma_mixhi")) or "dst_sel" in mods or "op_sel" in mods:
                    self.opsel_w[r] = p
            for r in writes:
                if r[0] == "s":
                    self.valu_sw[r] = p
                    if r[1] in (126, 127):
                        self.valu_exec = p
        elif is_salu:
            for r in writes:
                self.valu_sw.pop(r, None)
                if r == ("s", 124):
                    self.salu_m0 = p
        if is_vmem and "store" in mn and ("x4" in mn or "x3" in mn):
            data = regs[0] if mn.startswith("buffer_") else regs[1]
            for r in data:
                self.store_d[r] = p
        if mn.startswith(("s_cbranch", "s_branch")):
            pass

    def text(self, lds_note=""):
        nv = self.maxv + 1
        acc_off = max(4, (nv + 3) // 4 * 4)
        na = self.maxa + 1
        nfv = acc_off + na if na > 0 else nv
        body = [".globl %s" % self.name, ".p2align 8", ".type %s,@function" % self.name, self.name + ":"]
        body += self.lines
        desc = """.amdhsa_kernel %s
  .amdhsa_next_free_vgpr %d
  .amdhsa_next_free_sgpr %d
  .amdhsa_accum_offset %d
  .amdhsa_group_segment_fixed_size 0
  .amdhsa_kernarg_size 88
  .amdhsa_user_sgpr_count 2
  .amdhsa_user_sgpr_kernarg_segment_ptr 1
  .amdhsa_system_sgpr_workgroup_id_x 1
  .amdhsa_float_denorm_mode_32 3
  .amdhsa_float_denorm_mode_16_64 3
.end_amdhsa_kernel""" % (self.name, max(nfv, 8), max(self.maxs + 1, 16), acc_off)
        return "\n".join(body), desc


def vr(base, n=1):
    return "v%d" % base if n == 1 else "v[%d:%d]" % (base, base + n - 1)


def ar(base, n=1):
    return "a%d" % base if n == 1 else "a[%d:%d]" % (base, base + n - 1)


def sr(base, n=1):
    return "s%d" % base if n == 1 else "s[%d:%d]" % (base, base + n - 1)
```

```python
import numpy as np
import tables as T
from asmlib import Kern, vr, ar, sr

XD = 0x0000000
WT = 0x0300000
WMAX = 0x0600000
YD = 0x0700000
HB = 0x0A00000
HN = 0x0D00000
WINF = 0x1000000
WIMG = 143360
WOUTF = 0x1300000
WOIMG = 138240
Z2N = 0x1500000
Z1 = 0x1900000
STATS = 0x1D00000
UF = 0x1E00000
WS_END = 0x2200000

YSL = 384
YBLK = YSL * 32


class Blob:
    def __init__(self):
        self.data = bytearray()
        self.off = {}

    def add(self, name, arr):
        b = np.ascontiguousarray(arr).tobytes()
        while len(self.data) % 256:
            self.data += b"\0"
        self.off[name] = len(self.data)
        self.data += b

    def asm(self):
        while len(self.data) % 256:
            self.data += b"\0"
        q = np.frombuffer(bytes(self.data), dtype="<u8")
        out = [".p2align 8", ".type tbl,@object", "tbl:"]
        for i in range(0, len(q), 8):
            out.append(".quad " + ",".join("0x%x" % int(v) for v in q[i:i + 8]))
        out.append(".size tbl, %d" % len(self.data))
        return "\n".join(out)


def lane_major16(arr):
    a = np.asarray(arr)
    n = a.shape[1]
    return a.reshape(64, n // 4, 4).transpose(1, 0, 2).copy()


def slot_of(k1, k2):
    return ((k2 >> 2) * 12 + k1) * 4 + (k2 & 3)


def col_slots(col):
    if col > 320:
        return []
    k1, k2 = col % 20, col // 20
    lst = []
    if k1 <= 10:
        lst.append(slot_of(k1, k2))
    kk = 640 - col
    if kk > 320 and kk % 20 <= 10 and kk // 20 < 32:
        lst.append(slot_of(kk % 20, kk // 20))
    return lst


NOSLOT = 0x40000000


def build_tables():
    B = Blob()
    B.add("k1_B1", T.frag_bits_bf16(T.k1_B1().reshape(-1)).reshape(4, 64, 8))
    B.add("k1_tw", lane_major16(T.k1_tw().reshape(64, 16)))
    B.add("k1_G3", T.frag_bits_f16(T.k1_G3()).reshape(8, 64, 8))
    oc = T.k1_outcol().reshape(64, 8)
    oc = np.where(oc < 0, 383, oc) * 4
    B.add("k1_oc", lane_major16(oc.astype(np.uint32)))
    B.add("k2_F1", T.frag_bits_f16(T.k2_F1()).reshape(32, 64, 8))
    B.add("k2_tw1", np.stack([lane_major16(T.k2_tw1()[w].reshape(64, 16)) for w in range(4)]))
    B.add("k2_G3", T.frag_bits_f16(T.k2_G3()).reshape(8, 64, 8))
    B.add("k2_G1i", T.frag_bits_f16(T.k2_G1i()).reshape(8, 64, 8))
    B.add("k2_tw2", np.stack([lane_major16(T.k2_tw2()[w].reshape(64, 16)) for w in range(4)]))
    B.add("k2_F3i", T.frag_bits_f16(T.k2_F3i()).reshape(32, 64, 8))
    sl = np.full((168, 8), NOSLOT, np.uint32)
    for pi in range(161):
        if pi < 160:
            k2h = (pi // 40) * 2 + (pi & 1)
            k1 = (pi % 40) >> 1
            col0 = 40 * k2h + k1
        else:
            col0 = 320
        sl[pi, 0] = col0 * 8192
        for c in range(2):
            for i, s_ in enumerate(col_slots(col0 + 20 * c)):
                sl[pi, 1 + 2 * c + i] = s_ * 32
    B.add("k2_slot", sl)
    B.add("k3_H1", T.frag_bits_f16(T.k3_H1()).reshape(8, 64, 8))
    B.add("k3_tw", lane_major16(T.k3_tw().reshape(64, 16)))
    B.add("k3_H3", T.frag_bits_f16(T.k3_H3()).reshape(2, 64, 8))
    return B


TB = build_tables()


def table_srd(k, s, uid):
    k("s_getpc_b64 s[%d:%d]" % (s, s + 1))
    k.raw("%s_pc:" % uid)
    k("s_sub_u32 s%d, s%d, %s_pc-tbl" % (s, s, uid))
    k("s_subb_u32 s%d, s%d, 0" % (s + 1, s + 1))
    k("s_mov_b32 s%d, %d" % (s + 2, len(TB.data)))
    k("s_mov_b32 s%d, 0x20000" % (s + 3))


def srd(k, s, base, off, size):
    if off:
        k("s_add_u32 s%d, s%d, 0x%x" % (s, base, off))
        k("s_addc_u32 s%d, s%d, 0" % (s + 1, base + 1))
    elif s != base:
        k("s_mov_b64 s[%d:%d], s[%d:%d]" % (s, s + 1, base, base + 1))
    k("s_mov_b32 s%d, 0x%x" % (s + 2, size))
    k("s_mov_b32 s%d, 0x20000" % (s + 3))


class SOff:
    def __init__(self, k, tmp):
        self.k, self.tmp, self.cur = k, tmp, None

    def get(self, off, base=None):
        hi, lo = off & ~0xFFF, off & 0xFFF
        if hi == 0:
            return ("s%d" % base if base is not None else "0"), lo
        key = (hi, base)
        if self.cur != key:
            if base is None:
                self.k("s_mov_b32 s%d, 0x%x" % (self.tmp, hi))
            else:
                self.k("s_add_u32 s%d, s%d, 0x%x" % (self.tmp, base, hi))
            self.cur = key
        return "s%d" % self.tmp, lo


def bload(k, so, dst, n, voff, srd_, off, base=None, mods=""):
    s, imm = so.get(off, base)
    op = {1: "buffer_load_dword", 2: "buffer_load_dwordx2", 4: "buffer_load_dwordx4"}[n]
    k("%s %s, %s, s[%d:%d], %s offen%s%s" % (op, dst, voff, srd_, srd_ + 3, s,
                                           (" offset:%d" % imm) if imm else "", mods))


def bstore(k, so, src, n, voff, srd_, off, base=None, mods=""):
    s, imm = so.get(off, base)
    op = {1: "buffer_store_dword", 2: "buffer_store_dwordx2", 4: "buffer_store_dwordx4"}[n]
    k("%s %s, %s, s[%d:%d], %s offen%s%s" % (op, src, voff, srd_, srd_ + 3, s,
                                           (" offset:%d" % imm) if imm else "", mods))


def wave_reduce(k, regs, op="v_add_f32"):
    for ctrl in ("row_shr:1", "row_shr:2", "row_shr:4", "row_shr:8",
                 "row_bcast:15 row_mask:0xa", "row_bcast:31 row_mask:0xc"):
        for r in regs:
            k("%s v%d, v%d, v%d %s" % (op, r, r, r, ctrl))


def f32hex(x):
    return "0x%08x" % int(np.float32(x).view(np.uint32))


def layernorm_rows(k, rows, n, sbase):
    inv = f32hex(1.0 / n)
    for R in rows:
        x, t = R["x"], R["tmp"]
        k("v_add_f32 v%d, v%d, v%d" % (t[0], x[0], x[1]))
        for i in range(2, len(x)):
            k("v_add_f32 v%d, v%d, v%d" % (t[0], t[0], x[i]))
    wave_reduce(k, [R["tmp"][0] for R in rows])
    for j, R in enumerate(rows):
        k("v_readlane_b32 s%d, v%d, 63" % (sbase + j, R["tmp"][0]))
    for j, R in enumerate(rows):
        t = R["tmp"]
        k("v_mov_b32 v%d, %s" % (t[1], inv))
        k("v_mul_f32 v%d, s%d, v%d" % (t[1], sbase + j, t[1]))
    for R in rows:
        x, t = R["x"], R["tmp"]
        for i in range(len(x)):
            k("v_sub_f32 v%d, v%d, v%d" % (t[2], x[i], t[1]))
            if i == 0:
                k("v_mul_f32 v%d, v%d, v%d" % (t[0], t[2], t[2]))
            else:
                k("v_fmac_f32 v%d, v%d, v%d" % (t[0], t[2], t[2]))
    wave_reduce(k, [R["tmp"][0] for R in rows])
    for j, R in enumerate(rows):
        k("v_readlane_b32 s%d, v%d, 63" % (sbase + j, R["tmp"][0]))
    for j, R in enumerate(rows):
        t = R["tmp"]
        k("v_mov_b32 v%d, %s" % (t[0], inv))
        k("v_mul_f32 v%d, s%d, v%d" % (t[0], sbase + j, t[0]))
    stats_to_scale(k, [(R["tmp"][1], R["tmp"][0], R["tmp"][2]) for R in rows])
    for R in rows:
        x, t = R["x"], R["tmp"]
        normalize(k, x, t[1], t[0], t[2])


def stats_to_scale(k, lst):
    for m, v, t in lst:
        k("v_cvt_pk_bf16_f32 v%d, v%d, v%d" % (t, m, v))
    for m, v, t in lst:
        k("v_lshlrev_b32 v%d, 16, v%d" % (m, t))
        k("v_and_b32 v%d, 0xffff0000, v%d" % (v, t))
        k("v_add_f32 v%d, %s, v%d" % (v, f32hex(1e-5), v))
        k("v_cvt_pk_bf16_f32 v%d, v%d, v%d" % (v, v, v))
        k("v_lshlrev_b32 v%d, 16, v%d" % (v, v))
    for m, v, t in lst:
        k("v_sqrt_f32 v%d, v%d" % (v, v))
    for m, v, t in lst:
        k("v_cvt_pk_bf16_f32 v%d, v%d, v%d" % (v, v, v))
        k("v_lshlrev_b32 v%d, 16, v%d" % (v, v))
    for m, v, t in lst:
        k("v_rcp_f32 v%d, v%d" % (v, v))


def normalize(k, x, m, r, t):
    for i in range(0, len(x), 2):
        a, b = x[i], x[i + 1]
        k("v_sub_f32 v%d, v%d, v%d" % (a, a, m))
        k("v_sub_f32 v%d, v%d, v%d" % (b, b, m))
        k("v_cvt_pk_bf16_f32 v%d, v%d, v%d" % (t, a, b))
        k("v_lshlrev_b32 v%d, 16, v%d" % (a, t))
        k("v_and_b32 v%d, 0xffff0000, v%d" % (b, t))
        k("v_mul_f32 v%d, v%d, v%d" % (a, a, r))
        k("v_mul_f32 v%d, v%d, v%d" % (b, b, r))


def cmul_pack(k, dst, dre, dim, wr, wi, t0, t1):
    k("v_mul_f32 v%d, v%d, v%d" % (t0, dim, wi))
    k("v_mul_f32 v%d, v%d, v%d" % (t1, dim, wr))
    k("v_fma_mixlo_f16 v%d, v%d, v%d, -v%d" % (dst, dre, wr, t0))
    k("v_fma_mixhi_f16 v%d, v%d, v%d, v%d" % (dst, dre, wi, t1))


def cmul_batch(k, items, tmps):
    for n, (dst, dre, dim, wr, wi) in enumerate(items):
        k("v_mul_f32 v%d, v%d, v%d" % (tmps[2 * n], dim, wi))
        k("v_mul_f32 v%d, v%d, v%d" % (tmps[2 * n + 1], dim, wr))
    for n, (dst, dre, dim, wr, wi) in enumerate(items):
        k("v_fma_mixlo_f16 v%d, v%d, v%d, -v%d" % (dst, dre, wr, tmps[2 * n]))
    for n, (dst, dre, dim, wr, wi) in enumerate(items):
        k("v_fma_mixhi_f16 v%d, v%d, v%d, v%d" % (dst, dre, wi, tmps[2 * n + 1]))
```

```python
from common import *


def gen_k1():
    k = Kern("k1_kernel")
    so = SOff(k, 40)
    k("s_cmp_ge_u32 s2, 256")
    k("s_cbranch_scc1 k1_end")
    k("s_load_dwordx4 s[4:7], s[0:1], 0")
    k("s_load_dwordx2 s[8:9], s[0:1], 16")
    k("s_load_dwordx2 s[10:11], s[0:1], 80")
    table_srd(k, 28, "k1")
    k("s_and_b32 s3, s2, 7")
    k("s_lshl_b32 s3, s3, 5")
    k("s_lshr_b32 s33, s2, 3")
    k("s_or_b32 s3, s3, s33")
    k("v_and_b32 v1, 63, v0")
    k("v_lshrrev_b32 v2, 6, v0")
    k("v_lshlrev_b32 v3, 4, v1")
    k("v_readfirstlane_b32 s32, v2")
    B1, TW, G3, OC = 20, 36, 52, 84
    for i in range(4):
        bload(k, so, vr(B1 + 4 * i, 4), 4, "v3", 28, TB.off["k1_B1"] + 1024 * i)
    for i in range(4):
        bload(k, so, vr(TW + 4 * i, 4), 4, "v3", 28, TB.off["k1_tw"] + 1024 * i)
    for i in range(8):
        bload(k, so, vr(G3 + 4 * i, 4), 4, "v3", 28, TB.off["k1_G3"] + 1024 * i)
    for i in range(2):
        bload(k, so, vr(OC + 4 * i, 4), 4, "v3", 28, TB.off["k1_oc"] + 1024 * i)
    k("v_lshrrev_b32 v4, 4, v1")
    k("v_mul_u32_u24 v2, 320, v4")
    k("v_and_b32 v4, 15, v1")
    k("v_lshl_add_u32 v2, v4, 2, v2")
    k("s_lshr_b32 s33, s3, 4")
    k("s_lshl_b32 s33, s33, 7")
    k("s_and_b32 s34, s3, 15")
    k("s_add_u32 s33, s33, s34")
    k("s_lshl_b32 s34, s32, 5")
    k("s_add_u32 s33, s33, s34")
    k("s_mul_i32 s33, s33, 1280")
    k("s_add_u32 s34, s33, 20480")
    k("s_lshr_b32 s35, s3, 6")
    k("s_lshl_b32 s35, s35, 4")
    k("s_and_b32 s36, s3, 15")
    k("s_add_u32 s35, s35, s36")
    k("s_bfe_u32 s36, s3, 0x20004")
    k("s_lshl_b32 s36, s36, 7")
    k("s_add_u32 s35, s35, s36")
    k("s_mul_i32 s35, s35, 642")
    k("s_add_u32 s36, s35, %d" % (64 * 642))
    k("s_add_u32 s37, s35, %d" % (512 * 642))
    k("s_add_u32 s38, s35, %d" % (576 * 642))
    k("v_and_b32 v4, 31, v1")
    k("s_lshl_b32 s39, s32, 5")
    k("v_add_u32 v4, s39, v4")
    k("v_lshrrev_b32 v5, 5, v1")
    k("v_mul_u32_u24 v6, %d, v5" % (1024 * 642))
    k("v_lshl_add_u32 v6, v4, 1, v6")
    k("v_lshlrev_b32 v7, 13, v4")
    k("v_lshl_add_u32 v7, v5, 4, v7")
    k("v_mul_u32_u24 v8, %d, v5" % (4 * 1536))
    k("v_lshl_add_u32 v8, v4, 2, v8")
    k("s_waitcnt lgkmcnt(0)")
    srd(k, 12, 4, 0, 2048 * 1280)
    srd(k, 16, 6, 0, 2048 * 642)
    srd(k, 20, 8, 0, 2048 * 642)
    srd(k, 24, 10, 0, WS_END)
    X = 10
    for mt in range(2):
        for i in range(5):
            k("buffer_load_dword v%d, v2, s[12:15], s%d offen offset:%d" % (X + 5 * mt + i, 33 + mt, 64 * i))
    WR, WI = 92, 104
    for rnd in range(3):
        for e in range(4):
            k("buffer_load_ushort v%d, v6, s[16:19], s%d offen offset:%d" % (WR + 4 * rnd + e, 35 + e, 256 * rnd))
            k("buffer_load_ushort v%d, v6, s[20:23], s%d offen offset:%d" % (WI + 4 * rnd + e, 35 + e, 256 * rnd))
    XF = 116
    TMP = 136
    k("s_waitcnt vmcnt(24)")
    for mt in range(2):
        for i in range(5):
            k("v_lshlrev_b32 v%d, 16, v%d" % (XF + 10 * mt + i, X + 5 * mt + i))
            k("v_and_b32 v%d, 0xffff0000, v%d" % (XF + 10 * mt + 5 + i, X + 5 * mt + i))
    rows = [dict(x=[XF + 10 * mt + j for j in range(10)], tmp=[TMP + 4 * mt + j for j in range(4)]) for mt in range(2)]
    layernorm_rows(k, rows, 640, 41)
    AF = 144
    for mt in range(2):
        for p in range(2):
            a = AF + (mt * 2 + p) * 4
            x = XF + 10 * mt + 5 * p
            k("v_cvt_pk_bf16_f32 v%d, v%d, v%d" % (a, x, x + 1))
            k("v_cvt_pk_bf16_f32 v%d, v%d, v%d" % (a + 1, x + 2, x + 3))
            k("v_cvt_pk_bf16_f32 v%d, v%d, 0" % (a + 2, x + 4))
            k("v_mov_b32 v%d, 0" % (a + 3))
    D1 = 160
    for mt in range(2):
        for p in range(2):
            for hl in (1, 0):
                for cp in range(2):
                    d = D1 + ((mt * 2 + p) * 2 + cp) * 4
                    a = AF + (mt * 2 + p) * 4
                    b = B1 + (cp * 2 + hl) * 4
                    k("v_mfma_f32_16x16x32_bf16 %s, %s, %s, %s" % (vr(d, 4), vr(a, 4), vr(b, 4), "0" if hl == 1 else vr(d, 4)))
    k("s_mul_i32 s39, s32, 1536")
    for i in range(8):
        k("v_add_u32 v%d, s39, v%d" % (OC + i, OC + i))
    PF = 192
    for mt in range(2):
        for p in range(2):
            d = D1 + ((mt * 2 + p) * 2) * 4
            items = [(PF + (mt * 2 + p) * 4 + r, d + r, d + 4 + r, TW + (p * 4 + r) * 2, TW + (p * 4 + r) * 2 + 1) for r in range(4)]
            cmul_batch(k, items, [XF + j for j in range(8)])
    D3 = 208
    for mt in range(2):
        for t in range(4):
            d = D3 + (mt * 4 + t) * 4
            for p in range(2):
                k("v_mfma_f32_16x16x32_f16 %s, %s, %s, %s" % (vr(d, 4), vr(G3 + (t * 2 + p) * 4, 4), vr(PF + (mt * 2 + p) * 4, 4),
                                                          "0" if p == 0 else vr(d, 4)))
    for mt in range(2):
        for t in range(4):
            d = D3 + (mt * 4 + t) * 4
            for pp in range(2):
                o = XF + (mt * 4 + t) * 2 + pp
                k("v_cvt_pk_f16_f32 v%d, v%d, v%d" % (o, d + 2 * pp, d + 2 * pp + 1))
                k("ds_write_b32 v%d, v%d offset:%d" % (OC + t * 2 + pp, o, mt * 4 * 1536))
    k("s_waitcnt vmcnt(0)")
    k("s_lshl_b32 s39, s3, 5")
    k("v_mov_b32 v9, 0")
    for rnd in range(3):
        for e in range(4):
            r = WR + 4 * rnd + e
            k("v_lshl_or_b32 v%d, v%d, 16, v%d" % (r, WI + 4 * rnd + e, r))
            k("v_and_b32 v%d, 0x7fff7fff, v%d" % (TMP, r))
            k("v_pk_max_u16 v9, v9, v%d" % TMP)
        bstore(k, so, vr(WR + 4 * rnd, 4), 4, "v7", 24, WT + rnd * 0x100000, base=39)
    k("v_lshrrev_b32 v%d, 16, v9" % TMP)
    k("v_and_b32 v9, 0xffff, v9")
    k("v_max_u32 v9, v9, v%d" % TMP)
    wave_reduce(k, [9], "v_max_u32")
    k("v_readlane_b32 s41, v9, 63")
    k("s_lshl_b32 s42, s3, 4")
    k("s_lshl_b32 s43, s32, 2")
    k("s_add_u32 s42, s42, s43")
    k("v_mov_b32 v9, s41")
    k("v_mov_b32 v%d, s42" % TMP)
    bstore(k, so, "v9", 1, "v%d" % TMP, 24, WMAX)
    k("s_waitcnt lgkmcnt(0)")
    k("s_barrier")
    O = 160
    for rnd in range(3):
        k("ds_read2st64_b32 %s, v8 offset0:%d offset1:%d" % (vr(O + 4 * rnd, 2), 2 * rnd, 2 * rnd + 6))
        k("ds_read2st64_b32 %s, v8 offset0:%d offset1:%d" % (vr(O + 4 * rnd + 2, 2), 2 * rnd + 12, 2 * rnd + 18))
    for rnd in range(3):
        k("s_waitcnt lgkmcnt(%d)" % (4 - 2 * rnd))
        bstore(k, so, vr(O + 4 * rnd, 4), 4, "v7", 24, XD + rnd * 0x100000, base=39)
    k.label("k1_end")
    k("s_endpgm")
    return k, (256, 256, 8 * 1536)
```

```python
from common import *


def wscale(k, so, srd_ws, vtmp, vl16, sdst):
    k.tag = "wmax"
    bload(k, so, vr(vtmp, 4), 4, vl16, srd_ws, WMAX)


def wscale_finish(k, vtmp, sdst):
    k.wait("wmax")
    k("v_max_u32 v%d, v%d, v%d" % (vtmp, vtmp, vtmp + 1))
    k("v_max_u32 v%d, v%d, v%d" % (vtmp + 2, vtmp + 2, vtmp + 3))
    k("v_max_u32 v%d, v%d, v%d" % (vtmp, vtmp, vtmp + 2))
    wave_reduce(k, [vtmp], "v_max_u32")
    k("v_readlane_b32 s%d, v%d, 63" % (sdst, vtmp))
    k("s_lshr_b32 s%d, s%d, 7" % (sdst, sdst))
    k("s_sub_i32 s%d, 253, s%d" % (sdst, sdst))
    k("s_max_i32 s%d, s%d, 1" % (sdst, sdst))


def gen_prep(k):
    k.label("k2_prep")
    k("s_load_dwordx2 s[4:5], s[0:1], 32")
    k("s_load_dwordx2 s[6:7], s[0:1], 56")
    k("s_load_dwordx2 s[10:11], s[0:1], 80")
    k("v_and_b32 v1, 63, v0")
    k("v_lshrrev_b32 v2, 6, v0")
    k("v_lshlrev_b32 v3, 4, v1")
    k("v_readfirstlane_b32 s32, v2")
    k("v_lshrrev_b32 v4, 4, v1")
    k("v_and_b32 v5, 15, v1")
    k("s_sub_u32 s3, s2, 168")
    k("s_lshl_b32 s3, s3, 2")
    k("s_add_u32 s3, s3, s32")
    k("s_cmp_ge_u32 s3, 336")
    k("s_cbranch_scc1 k2_end2")
    k("s_waitcnt lgkmcnt(0)")
    srd(k, 24, 10, 0, WS_END)
    k("s_cmp_ge_u32 s3, 216")
    k("s_cbranch_scc1 k2_prep_out")
    srd(k, 12, 4, 0, 640 * 3456)
    k("s_lshr_b32 s33, s3, 1")
    k("s_and_b32 s34, s3, 1")
    k("s_mul_i32 s35, s34, %d" % (10 * 32 * 3456))
    k("s_lshl_b32 s36, s33, 5")
    k("s_add_u32 s35, s35, s36")
    k("s_mov_b32 s36, %d" % (32 * 3456))
    k("s_mul_i32 s37, s33, 20")
    k("s_mul_i32 s38, s34, 10")
    k("s_add_u32 s37, s37, s38")
    k("s_lshl_b32 s37, s37, 10")
    k("s_add_u32 s37, s37, 0x%x" % WINF)
    k("v_mul_u32_u24 v6, %d, v4" % (8 * 3456))
    k("v_lshl_add_u32 v8, v5, 1, v6")
    for j in range(1, 8):
        k("v_add_u32 v%d, %d, v8" % (8 + j, j * 3456))
    k.settle()
    k("s_branch k2_prep_go")
    k.label("k2_prep_out")
    srd(k, 12, 6, 0, 864 * 1280)
    k("s_sub_u32 s3, s3, 216")
    k("s_mul_hi_u32 s33, s3, 0x55555556")
    k("s_mul_i32 s34, s33, 3")
    k("s_sub_u32 s34, s3, s34")
    k("s_mul_i32 s34, s34, 9")
    k("s_min_u32 s34, s34, 17")
    k("s_mul_hi_u32 s38, s33, 0x33333334")
    k("s_mul_i32 s39, s38, 5")
    k("s_sub_u32 s39, s33, s39")
    k("s_mul_i32 s38, s38, 160")
    k("s_lshl_b32 s39, s39, 3")
    k("s_add_u32 s38, s38, s39")
    k("s_mul_i32 s35, s34, %d" % (32 * 1280))
    k("s_add_u32 s35, s35, s38")
    k("s_mov_b32 s36, %d" % (32 * 1280))
    k("s_mul_i32 s37, s33, 27")
    k("s_add_u32 s37, s37, s34")
    k("s_lshl_b32 s37, s37, 10")
    k("s_add_u32 s37, s37, 0x%x" % WOUTF)
    k("v_mul_u32_u24 v6, %d, v4" % (4 * 1280))
    k("v_lshrrev_b32 v7, 2, v5")
    k("v_mad_u32_u24 v6, v7, 40, v6")
    k("v_and_b32 v7, 3, v5")
    k("v_lshl_add_u32 v8, v7, 1, v6")
    for j in range(1, 8):
        k("v_add_u32 v%d, %d, v8" % (8 + j, (16 * (j >> 2) + (j & 3)) * 1280))
    k.label("k2_prep_go")
    R = 16
    for b in range(2):
        for i in range(5):
            for j in range(8):
                k("buffer_load_ushort v%d, v%d, s[12:15], s35 offen" % (R + i * 8 + j, 8 + j))
            k("s_add_u32 s35, s35, s36")
        for i in range(5):
            k("s_waitcnt vmcnt(%d)" % (32 - 8 * i + i))
            for j in range(4):
                k("v_lshl_or_b32 v%d, v%d, 16, v%d" % (56 + i * 4 + j, R + i * 8 + 2 * j + 1, R + i * 8 + 2 * j))
            k("buffer_store_dwordx4 %s, v3, s[24:27], s37 offen" % vr(56 + i * 4, 4))
            k("s_add_u32 s37, s37, 1024")
        if b == 0:
            k("s_waitcnt vmcnt(0)")
    k.label("k2_end2")
    k("s_endpgm")


def gen_k2():
    k = Kern("k2_kernel")
    so = SOff(k, 40)
    NC = 2
    k("s_and_b32 s3, s2, 7")
    k("s_mul_i32 s3, s3, 21")
    k("s_lshr_b32 s33, s2, 3")
    k("s_add_u32 s3, s3, s33")
    k("s_cmp_ge_u32 s2, 168")
    k("s_cbranch_scc1 k2_prep")
    k("s_cmp_ge_u32 s3, 161")
    k("s_cbranch_scc1 k2_end")
    k("s_load_dwordx2 s[10:11], s[0:1], 80")
    table_srd(k, 28, "k2")
    k("s_lshl_b32 s33, s3, 5")
    k("s_add_u32 s33, s33, %d" % TB.off["k2_slot"])
    k("s_load_dwordx8 s[52:59], s[28:29], s33")
    k("v_and_b32 v1, 63, v0")
    k("v_lshrrev_b32 v2, 6, v0")
    k("v_lshlrev_b32 v3, 4, v1")
    k("v_readfirstlane_b32 s32, v2")
    k("v_lshlrev_b32 v4, 5, v1")
    k("v_lshlrev_b32 v5, 5, v0")
    k("v_mul_u32_u24 v6, %d, v0" % YBLK)
    aF1, aG3, aG1, aF3 = 0, 32, 64, 96
    A, TW1, TW2, W, WM = 16, 80, 96, 112, 128
    k("s_lshl_b32 s34, s32, 13")
    k("s_lshl_b32 s35, s32, 12")
    k("s_lshr_b32 s36, s32, 1")
    k("s_lshl_b32 s36, s36, 14")
    k.tag = "F1"
    for i in range(8):
        bload(k, so, ar(aF1 + 4 * i, 4), 4, "v3", 28, TB.off["k2_F1"] + 1024 * i, base=34)
    k("s_waitcnt lgkmcnt(0)")
    k("s_mov_b32 s37, s52")
    srd(k, 24, 10, 0, WS_END)
    for c in range(NC):
        k.tag = "A%d" % c
        for ks in range(4):
            for mt in range(2):
                bload(k, so, vr(A + c * 32 + (mt * 4 + ks) * 4, 4), 4, "v4", 24, XD + c * 163840 + ks * 2048 + mt * 16, base=37)
    wscale(k, so, 24, WM, "v3", 41)
    k.tag = "tw1"
    for i in range(4):
        bload(k, so, vr(TW1 + 4 * i, 4), 4, "v3", 28, TB.off["k2_tw1"] + 1024 * i, base=35)
    k.tag = "G3"
    for i in range(8):
        bload(k, so, ar(aG3 + 4 * i, 4), 4, "v3", 28, TB.off["k2_G3"] + 1024 * i)
    k.tag = "W"
    for c in range(NC):
        for h in range(2):
            bload(k, so, vr(W + c * 8 + h * 4, 4), 4, "v5", 24, WT + c * 163840 + h * 16, base=37)
    k.tag = "G1"
    for i in range(8):
        bload(k, so, ar(aG1 + 4 * i, 4), 4, "v3", 28, TB.off["k2_G1i"] + 1024 * i)
    k.tag = "tw2"
    for i in range(4):
        bload(k, so, vr(TW2 + 4 * i, 4), 4, "v3", 28, TB.off["k2_tw2"] + 1024 * i, base=35)
    D = 132
    P = 164
    TMP = 180
    WS = 196
    f3i = 0
    for c in range(NC):
        k.wait("A%d" % c)
        for ks in range(4):
            for mt in range(2):
                for cp in range(2):
                    d = D + c * 16 + (mt * 2 + cp) * 4
                    k("v_mfma_f32_16x16x32_f16 %s, %s, %s, %s" % (vr(d, 4), vr(A + c * 32 + (mt * 4 + ks) * 4, 4),
                                                              ar(aF1 + (ks * 2 + cp) * 4, 4), "0" if ks == 0 else vr(d, 4)))
                if c == 0:
                    k.tag = "F3"
                    for _ in range(2):
                        bload(k, so, ar(aF3 + 4 * f3i, 4), 4, "v3", 28, TB.off["k2_F3i"] + 1024 * f3i, base=36)
                        f3i += 1
    wscale_finish(k, WM, 41)
    k("s_lshl_b32 s42, s41, 7")
    k("s_lshl_b32 s43, s41, 23")
    k.wait("tw1")
    for c in range(NC):
        for mt in range(2):
            d = D + c * 16 + mt * 8
            items = [(P + c * 8 + mt * 4 + r, d + r, d + 4 + r, TW1 + (mt * 4 + r) * 2, TW1 + (mt * 4 + r) * 2 + 1) for r in range(4)]
            cmul_batch(k, items, [TMP + j for j in range(8)])
    k.wait("G3")
    for c in range(NC):
        for t in range(4):
            d = D + c * 16 + t * 4
            for mt in range(2):
                k("v_mfma_f32_16x16x32_f16 %s, %s, %s, %s" % (vr(d, 4), ar(aG3 + (t * 2 + mt) * 4, 4), vr(P + c * 8 + mt * 4, 4),
                                                          "0" if mt == 0 else vr(d, 4)))
    k.wait("W")
    for c in range(NC):
        for e in range(8):
            k("v_dot2_f32_bf16 v%d, v%d, s42, 0" % (WS + 2 * e, W + c * 8 + e))
            k("v_dot2_f32_bf16 v%d, v%d, s43, 0" % (WS + 2 * e + 1, W + c * 8 + e))
        items = [(P + c * 8 + e, D + c * 16 + (e >> 1) * 4 + (e & 1) * 2, D + c * 16 + (e >> 1) * 4 + (e & 1) * 2 + 1,
                  WS + 2 * e, WS + 2 * e + 1) for e in range(8)]
        cmul_batch(k, items, [TMP + j for j in range(16)])
    k.wait("G1")
    for c in range(NC):
        for at in range(2):
            for cp in range(2):
                d = D + c * 16 + (at * 2 + cp) * 4
                for u in range(2):
                    k("v_mfma_f32_16x16x32_f16 %s, %s, %s, %s" % (vr(d, 4), vr(P + c * 8 + u * 4, 4),
                                                              ar(aG1 + ((u * 2 + at) * 2 + cp) * 4, 4), "0" if u == 0 else vr(d, 4)))
    k("s_lshl_b32 s38, s32, 11")
    k("v_add_u32 v7, s38, v3")
    k("s_and_b32 s38, s32, 1")
    k("s_lshl_b32 s38, s38, 10")
    k("v_add_u32 v8, s38, v3")
    k.wait("tw2")
    for c in range(NC):
        for at in range(2):
            d = D + c * 16 + at * 8
            items = [(P + c * 8 + at * 4 + r, d + r, d + 4 + r, TW2 + (at * 4 + r) * 2, TW2 + (at * 4 + r) * 2 + 1) for r in range(4)]
            cmul_batch(k, items, [TMP + j for j in range(8)])
            k("ds_write_b128 v7, %s offset:%d" % (vr(P + c * 8 + at * 4, 4), c * 8192 + at * 1024))
    k("s_waitcnt lgkmcnt(0)")
    k("s_barrier")
    Bf = A
    for c in range(NC):
        k.tag = "L%d" % c
        for kw in range(4):
            k("ds_read_b128 %s, v8 offset:%d" % (vr(Bf + c * 16 + kw * 4, 4), c * 8192 + kw * 2048))
    k.wait("F3")
    for c in range(NC):
        k.waitl("L%d" % c)
        for kw in range(4):
            for t in range(4):
                d = D + c * 16 + t * 4
                k("v_mfma_f32_16x16x32_f16 %s, %s, %s, %s" % (vr(d, 4), ar(aF3 + (t * 4 + kw) * 4, 4), vr(Bf + c * 16 + kw * 4, 4),
                                                          "0" if kw == 0 else vr(d, 4)))
    srd(k, 48, 10, YD, 256 * YBLK)
    for c in range(NC):
        for e in range(8):
            d = D + c * 16 + (e >> 1) * 4 + (e & 1) * 2
            k("v_cvt_pk_f16_f32 v%d, v%d, v%d" % (P + c * 8 + e, d, d + 1))
        for sl in range(2):
            k("s_cmp_eq_u32 s%d, 0x%x" % (53 + c * 2 + sl, NOSLOT))
            k.settle()
            k("s_cbranch_scc1 k2_sk%d%d" % (c, sl))
            for h in range(2):
                k("buffer_store_dwordx4 %s, v6, s[48:51], s%d offen offset:%d" % (vr(P + c * 8 + h * 4, 4), 53 + c * 2 + sl, 16 * h))
            k.label("k2_sk%d%d" % (c, sl))
    k.label("k2_end")
    k("s_endpgm")
    gen_prep(k)
    return k, (256, 256, 16384)
```

```python
from common import *
from k2 import wscale, wscale_finish

LP = 1552


def gen_k3():
    k = Kern("k3_kernel")
    so = SOff(k, 40)
    k("s_cmp_ge_u32 s2, 256")
    k("s_cbranch_scc1 k3_end")
    k("s_load_dwordx2 s[4:5], s[0:1], 0")
    k("s_load_dwordx2 s[10:11], s[0:1], 80")
    table_srd(k, 28, "k3")
    k("s_mov_b32 s3, s2")
    k("v_and_b32 v1, 63, v0")
    k("v_lshrrev_b32 v2, 6, v0")
    k("v_lshlrev_b32 v3, 4, v1")
    k("v_readfirstlane_b32 s32, v2")
    H1, TW, H3 = 20, 52, 68
    k.tag = "tb"
    for i in range(8):
        bload(k, so, vr(H1 + 4 * i, 4), 4, "v3", 28, TB.off["k3_H1"] + 1024 * i)
    for i in range(4):
        bload(k, so, vr(TW + 4 * i, 4), 4, "v3", 28, TB.off["k3_tw"] + 1024 * i)
    for i in range(2):
        bload(k, so, vr(H3 + 4 * i, 4), 4, "v3", 28, TB.off["k3_H3"] + 1024 * i)
    k("s_and_b32 s33, s3, 15")
    k("s_bfe_u32 s34, s3, 0x20004")
    k("s_lshl_b32 s34, s34, 6")
    k("s_add_u32 s33, s33, s34")
    k("s_bfe_u32 s34, s3, 0x10006")
    k("s_lshl_b32 s34, s34, 4")
    k("s_add_u32 s33, s33, s34")
    k("s_lshr_b32 s34, s3, 7")
    k("s_lshl_b32 s34, s34, 10")
    k("s_add_u32 s33, s33, s34")
    k("s_lshl_b32 s34, s32, 8")
    k("s_add_u32 s33, s33, s34")
    k("s_mul_i32 s33, s33, 1280")
    k("s_add_u32 s34, s33, %d" % (32 * 1280))
    k("s_mul_i32 s35, s3, %d" % YBLK)
    k("v_lshrrev_b32 v4, 4, v1")
    k("v_mul_u32_u24 v2, 320, v4")
    k("v_and_b32 v5, 15, v1")
    k("v_lshl_add_u32 v2, v5, 2, v2")
    k("v_lshlrev_b32 v6, 4, v0")
    k("v_and_b32 v7, 1, v0")
    k("v_mul_u32_u24 v7, %d, v7" % (4 * LP))
    k("v_lshrrev_b32 v8, 1, v0")
    k("v_lshl_add_u32 v7, v8, 2, v7")
    k("v_min_u32 v8, 10, v5")
    k("v_mad_u32_u24 v8, v4, 12, v8")
    k("v_lshlrev_b32 v8, 4, v8")
    k("s_mul_i32 s36, s32, %d" % (2 * LP))
    k("v_add_u32 v8, s36, v8")
    k("s_waitcnt lgkmcnt(0)")
    srd(k, 12, 4, 0, 2048 * 1280)
    srd(k, 24, 10, 0, WS_END)
    Y = 76
    k.tag = "y"
    for rnd in range(3):
        bload(k, so, vr(Y + 4 * rnd, 4), 4, "v6", 24, YD + 4096 * rnd, base=35)
    WM = 88
    wscale(k, so, 24, WM, "v3", 41)
    X = 10
    k.tag = "x"
    for pp in range(2):
        for i in range(5):
            k("buffer_load_dword v%d, v2, s[12:15], s%d offen offset:%d" % (X + 5 * pp + i, 33 + pp, 64 * i))
    k.wait("y")
    for rnd in range(3):
        for e in range(4):
            k("ds_write_b32 v7, v%d offset:%d" % (Y + 4 * rnd + e, e * LP + rnd * 512))
    k("s_waitcnt lgkmcnt(0)")
    k("s_barrier")
    A = 92
    for pp in range(2):
        k.tag = "a%d" % pp
        for u in range(2):
            k("ds_read_b128 %s, v8 offset:%d" % (vr(A + (pp * 2 + u) * 4, 4), pp * LP + u * 768))
    wscale_finish(k, WM, 41)
    k("s_sub_i32 s41, 254, s41")
    k("s_lshl_b32 s41, s41, 23")
    D = 108
    P = 140
    TMP = 156
    E = 172
    for pp in range(2):
        k.waitl("a%d" % pp)
        for u in range(2):
            for at in range(2):
                for cp in range(2):
                    d = D + ((pp * 2 + at) * 2 + cp) * 4
                    k("v_mfma_f32_16x16x32_f16 %s, %s, %s, %s" % (vr(d, 4), vr(A + (pp * 2 + u) * 4, 4),
                                                              vr(H1 + ((u * 2 + at) * 2 + cp) * 4, 4), "0" if u == 0 else vr(d, 4)))
    for pp in range(2):
        for at in range(2):
            d = D + (pp * 2 + at) * 8
            items = [(P + (pp * 2 + at) * 4 + r, d + r, d + 4 + r, TW + (at * 4 + r) * 2, TW + (at * 4 + r) * 2 + 1) for r in range(4)]
            cmul_batch(k, items, [TMP + j for j in range(8)])
    for pp in range(2):
        for at in range(2):
            for bt in range(2):
                e = E + ((pp * 2 + at) * 2 + bt) * 4
                k("v_mfma_f32_16x16x32_f16 %s, %s, %s, 0" % (vr(e, 4), vr(H3 + bt * 4, 4), vr(P + (pp * 2 + at) * 4, 4)))
    k.wait("x")
    XF = 108
    HP = 204
    for pp in range(2):
        for i in range(5):
            ys = []
            for at in range(2):
                e = E + (pp * 2 + at) * 8
                ys.append(e + i if i < 4 else e + 4)
            a, b = XF + 10 * pp + 2 * i, XF + 10 * pp + 2 * i + 1
            t = TMP
            k("v_mul_f32 v%d, s41, v%d" % (a, ys[0]))
            k("v_mul_f32 v%d, s41, v%d" % (b, ys[1]))
            k("v_cvt_pk_bf16_f32 v%d, v%d, v%d" % (t, a, b))
            k("v_lshlrev_b32 v%d, 16, v%d" % (a, t))
            k("v_and_b32 v%d, 0xffff0000, v%d" % (b, t))
            k("v_lshlrev_b32 v%d, 16, v%d" % (t + 1, X + 5 * pp + i))
            k("v_and_b32 v%d, 0xffff0000, v%d" % (t + 2, X + 5 * pp + i))
            k("v_add_f32 v%d, v%d, v%d" % (a, a, t + 1))
            k("v_add_f32 v%d, v%d, v%d" % (b, b, t + 2))
            h = HP + 5 * pp + i
            k("v_cvt_pk_bf16_f32 v%d, v%d, v%d" % (h, a, b))
            k("v_lshlrev_b32 v%d, 16, v%d" % (a, h))
            k("v_and_b32 v%d, 0xffff0000, v%d" % (b, h))
            bstore(k, so, "v%d" % h, 1, "v2", 24, HB + 64 * i, base=33 + pp)
    rows = [dict(x=[XF + 10 * pp + j for j in range(10)], tmp=[TMP + 4 * pp + j for j in range(4)]) for pp in range(2)]
    layernorm_rows(k, rows, 640, 42)
    for pp in range(2):
        for i in range(5):
            h = TMP + 8 + (i & 3)
            k("v_cvt_pk_bf16_f32 v%d, v%d, v%d" % (h, XF + 10 * pp + 2 * i, XF + 10 * pp + 2 * i + 1))
            bstore(k, so, "v%d" % h, 1, "v2", 24, HN + 64 * i, base=33 + pp)
    k.label("k3_end")
    k("s_endpgm")
    return k, (256, 256, 8 * LP)
```

```python
from common import *

BIG = 0x7f000000
C0 = -2.0 * np.sqrt(2.0 / np.pi) * np.log2(np.e)
C1 = C0 * 0.044715


def gelu_consts(k, base):
    for i, v in enumerate((C0, C0, C1, C1, 1.0, 1.0)):
        k("v_mov_b32 v%d, %s" % (base + i, f32hex(v)))


def gelu_pairs(k, pairs, tmps, cb):
    def P(r):
        return vr(r, 2)
    n = len(pairs)
    for i, (a, d) in enumerate(pairs):
        k("v_cvt_pk_bf16_f32 v%d, v%d, v%d" % (tmps[2 * i], a, a + 1))
    for i, (a, d) in enumerate(pairs):
        k("v_lshlrev_b32 v%d, 16, v%d" % (a, tmps[2 * i]))
        k("v_and_b32 v%d, 0xffff0000, v%d" % (a + 1, tmps[2 * i]))
    for i, (a, d) in enumerate(pairs):
        k("v_pk_mul_f32 %s, %s, %s" % (P(tmps[2 * i]), P(a), P(a)))
    for i, (a, d) in enumerate(pairs):
        k("v_pk_fma_f32 %s, %s, %s, %s" % (P(tmps[2 * i]), P(tmps[2 * i]), P(cb + 2), P(cb)))
    for i, (a, d) in enumerate(pairs):
        k("v_pk_mul_f32 %s, %s, %s" % (P(tmps[2 * i]), P(tmps[2 * i]), P(a)))
    for i, (a, d) in enumerate(pairs):
        k("v_exp_f32 v%d, v%d" % (tmps[2 * i], tmps[2 * i]))
        k("v_exp_f32 v%d, v%d" % (tmps[2 * i + 1], tmps[2 * i + 1]))
    for i, (a, d) in enumerate(pairs):
        k("v_pk_add_f32 %s, %s, %s" % (P(tmps[2 * i]), P(tmps[2 * i]), P(cb + 4)))
    for i, (a, d) in enumerate(pairs):
        k("v_rcp_f32 v%d, v%d" % (tmps[2 * i], tmps[2 * i]))
        k("v_rcp_f32 v%d, v%d" % (tmps[2 * i + 1], tmps[2 * i + 1]))
    for i, (a, d) in enumerate(pairs):
        k("v_pk_mul_f32 %s, %s, %s" % (P(a), P(a), P(tmps[2 * i])))
    for i, (a, d) in enumerate(pairs):
        k("v_cvt_pk_bf16_f32 v%d, v%d, v%d" % (d, a, a + 1))


def rowperm(k, dst, c, tmp):
    k("v_lshrrev_b32 v%d, 2, v%d" % (tmp, c))
    k("v_and_b32 v%d, 3, v%d" % (dst, c))
    k("v_lshl_add_u32 v%d, v%d, 3, v%d" % (dst, tmp, dst))


def gen_k4():
    k = Kern("k4_kernel")
    so = SOff(k, 40)
    k("s_cmp_ge_u32 s2, 256")
    k("s_cbranch_scc1 k4_end")
    k("s_load_dwordx4 s[8:11], s[0:1], 72")
    k("v_and_b32 v1, 63, v0")
    k("v_lshrrev_b32 v2, 6, v0")
    k("v_lshlrev_b32 v3, 4, v1")
    k("v_readfirstlane_b32 s32, v2")
    k("v_lshrrev_b32 v4, 4, v1")
    k("v_and_b32 v5, 15, v1")
    k("s_bfe_u32 s33, s2, 0x20001")
    k("s_lshl_b32 s33, s33, 2")
    k("s_lshr_b32 s34, s2, 6")
    k("s_add_u32 s33, s33, s34")
    k("s_and_b32 s34, s2, 1")
    k("s_lshl_b32 s34, s34, 3")
    k("s_bfe_u32 s35, s2, 0x30003")
    k("s_add_u32 s34, s34, s35")
    k("s_lshl_b32 s35, s34, 2")
    k("s_mul_i32 s36, s34, 3")
    k("s_add_u32 s37, s36, 6")
    k("s_cmp_lt_u32 s34, 6")
    k("s_cselect_b32 s41, s35, s37")
    k("s_cselect_b32 s42, 4, 3")
    k("s_sub_u32 s37, s35, 10")
    k("s_cmp_lt_u32 s34, 10")
    k("s_cselect_b32 s43, s36, s37")
    k("s_cselect_b32 s44, 3, 4")
    rowperm(k, 6, 5, 7)
    k("s_lshl_b32 s35, s33, 7")
    k("s_lshl_b32 s36, s32, 5")
    k("s_add_u32 s35, s35, s36")
    k("v_add_u32 v6, s35, v6")
    k("v_mul_u32_u24 v6, 1280, v6")
    k("v_lshl_add_u32 v6, v4, 4, v6")
    k("v_add_u32 v7, %d, v6" % (4 * 1280))
    k("s_add_u32 s35, s41, s32")
    k("s_add_u32 s35, s35, 54")
    k("s_mul_i32 s35, s35, 20480")
    k("s_cmp_lt_u32 s32, s42")
    k("s_cselect_b32 s35, s35, 0x%x" % BIG)
    k("v_add_u32 v8, s35, v3")
    k("s_add_u32 s35, s43, s32")
    k("s_mul_i32 s35, s35, 20480")
    k("s_cmp_lt_u32 s32, s44")
    k("s_cselect_b32 s35, s35, 0x%x" % BIG)
    k("v_add_u32 v9, s35, v3")
    k("v_add_u32 v14, 0x10000, v3")
    k("v_add_u32 v15, 0x20000, v3")
    k("s_mul_i32 s45, s32, 20480")
    k("s_waitcnt lgkmcnt(0)")
    srd(k, 12, 10, HN, 2048 * 1280)
    srd(k, 16, 10, WINF, 108 * 20480)
    srd(k, 24, 10, 0, WS_END)
    srd(k, 20, 8, 0, 256)

    def dma(voff, ks, ldsbase):
        if ks % 4 == 0:
            k("s_add_u32 m0, s45, %d" % (ldsbase + ks * 1024))
            k("s_mov_b32 s46, %d" % (ks * 1024))
        k("buffer_load_dwordx4 %s, s[16:19], s46 offen offset:%d lds" % (voff, (ks % 4) * 1024))

    for st in range(4):
        k.tag = "st%d" % st
        for ks in range(5 * st, 5 * st + 5):
            for e in range(2):
                k("buffer_load_dwordx4 %s, v%d, s[12:15], 0 offen offset:%d" % (ar((e * 20 + ks) * 4, 4), 6 + e, 64 * ks))
            dma("v8", ks, 0)
    BB, D2, D1, ZP, CB, S, TMP = 16, 48, 80, 112, 128, 136, 152
    gelu_consts(k, CB)

    def mm_pass(name, n, ldsbase, D, transposed, first):
        def rd(ks):
            for u in range(n):
                off = ldsbase + u * 20480 + ks * 1024
                k("ds_read_b128 %s, v%d offset:%d" % (vr(BB + (ks & 1) * 16 + u * 4, 4), (3, 14, 15)[off >> 16], off & 0xffff))
        for ks in range(20):
            if ks % 5 == 0:
                st = ks // 5
                if first:
                    k("s_waitcnt vmcnt(%d)" % first[st])
                    k("s_barrier")
                    if st == 1:
                        for kk in range(20):
                            dma("v9", kk, 81920)
                    rd(ks)
                elif ks == 0:
                    rd(ks)
            nxt = ks + 1 < 20 and not (first and (ks + 1) % 5 == 0)
            if nxt:
                rd(ks + 1)
                k("s_waitcnt lgkmcnt(%d)" % n)
            else:
                k("s_waitcnt lgkmcnt(0)")
            for u in range(n):
                for e in range(2):
                    d = D + (e * 4 + u) * 4
                    a = ar((e * 20 + ks) * 4, 4)
                    b = vr(BB + (ks & 1) * 16 + u * 4, 4)
                    if transposed:
                        a, b = b, a
                    k("v_mfma_f32_16x16x32_bf16 %s, %s, %s, %s" % (vr(d, 4), a, b, "0" if ks == 0 else vr(d, 4)))

    first = [45, 30, 15 + 20, 20]
    for n in (4, 3):
        if n == 4:
            k("s_cmp_eq_u32 s42, 3")
            k.settle()
            k("s_cbranch_scc1 k4_z2n3")
        else:
            k.label("k4_z2n3")
        mm_pass("z2", n, 0, D2, False, first)
        for i in range(16):
            k("v_mov_b32 v%d, 0" % (S + i))
        for u in range(n):
            pairs = [(D2 + (e * 4 + u) * 4 + 2 * hh, ZP + u * 4 + e * 2 + hh) for e in range(2) for hh in range(2)]
            gelu_pairs(k, pairs, [TMP + i for i in range(8)], CB)
            for (a, d) in pairs:
                k("v_lshlrev_b32 v%d, 16, v%d" % (a, d))
                k("v_and_b32 v%d, 0xffff0000, v%d" % (a + 1, d))
            for e in range(2):
                for hh in range(2):
                    a = D2 + (e * 4 + u) * 4 + 2 * hh
                    s_, q_ = S + e * 4 + 2 * hh, S + 8 + e * 4 + 2 * hh
                    k("v_pk_add_f32 %s, %s, %s" % (vr(s_, 2), vr(s_, 2), vr(a, 2)))
                    k("v_pk_fma_f32 %s, %s, %s, %s" % (vr(q_, 2), vr(a, 2), vr(a, 2), vr(q_, 2)))
        if n == 4:
            k.settle()
            k("s_branch k4_z2done")
    k.label("k4_z2done")
    def val(m, i):
        b = {0: 0, 1: 2, 2: 1, 3: 3}[i]
        return S + m * 4 + b
    Zr = TMP
    for m in range(4):
        for h2 in range(2):
            a, b = val(m, 2 * h2), val(m, 2 * h2 + 1)
            k("v_add_f32 v%d, v%d, v%d row_mirror bank_mask:0x3" % (Zr + 2 * m + h2, a, a))
    for m in range(4):
        for h2 in range(2):
            a, b = val(m, 2 * h2), val(m, 2 * h2 + 1)
            k("v_add_f32 v%d, v%d, v%d row_mirror bank_mask:0xc" % (Zr + 2 * m + h2, b, b))
    Yr = TMP + 8
    for m in range(4):
        k("v_add_f32 v%d, v%d, v%d row_half_mirror bank_mask:0x5" % (Yr + m, Zr + 2 * m, Zr + 2 * m))
    for m in range(4):
        k("v_add_f32 v%d, v%d, v%d row_half_mirror bank_mask:0xa" % (Yr + m, Zr + 2 * m + 1, Zr + 2 * m + 1))
    for qp in ("[1,0,3,2]", "[2,3,0,1]"):
        for m in range(4):
            k("v_add_f32 v%d, v%d, v%d quad_perm:%s" % (Yr + m, Yr + m, Yr + m, qp))
    k("s_lshl_b32 s47, s33, 4")
    k("s_add_u32 s48, s47, s34")
    k("s_lshl_b32 s48, s48, 10")
    k("s_lshl_b32 s49, s32, 8")
    k("s_add_u32 s48, s48, s49")
    k("v_lshrrev_b32 v10, 2, v1")
    k("v_lshlrev_b32 v10, 4, v10")
    bstore(k, so, vr(Yr, 4), 4, "v10", 24, STATS, base=48, mods=" sc1")
    k("s_lshl_b32 s50, s33, 4")
    k("s_lshl_b32 s51, s32, 2")
    k("s_add_u32 s50, s50, s51")
    k("v_mov_b32 v11, s50")
    k("v_mov_b32 v12, 1")
    k("s_waitcnt vmcnt(0)")
    k("s_barrier")
    k("s_mov_b64 exec, 1")
    k("buffer_atomic_add v12, v11, s[20:23], 0 offen sc1")
    k("s_mov_b64 exec, -1")
    k("s_lshl_b32 s52, s33, 2")
    k("s_add_u32 s52, s52, s32")
    k("s_mul_i32 s53, s52, %d" % (2 * 54 * 512))
    k("s_lshl_b32 s54, s43, 9")
    k("s_add_u32 s53, s53, s54")
    k("v_lshlrev_b32 v13, 3, v1")
    for n in (4, 3):
        if n == 4:
            k("s_cmp_eq_u32 s44, 3")
            k.settle()
            k("s_cbranch_scc1 k4_z1n3")
        else:
            k.label("k4_z1n3")
        mm_pass("z1", n, 81920, D1, True, None)
        so.cur = None
        for u in range(n):
            pairs = [(D1 + (e * 4 + u) * 4 + 2 * hh, TMP + 8 + e * 2 + hh) for e in range(2) for hh in range(2)]
            gelu_pairs(k, pairs, [TMP + i for i in range(8)], CB)
            for e in range(2):
                bstore(k, so, vr(TMP + 8 + e * 2, 2), 2, "v13", 24, Z1 + e * 54 * 512 + u * 512, base=53)
        if n == 4:
            k.settle()
            k("s_branch k4_z1done")
    k.label("k4_z1done")
    so.cur = None
    k("s_mov_b32 s55, 0")
    k.label("k4_poll")
    k("buffer_load_dword v12, v11, s[20:23], 0 offen sc1")
    k("s_add_u32 s55, s55, 1")
    k("s_waitcnt vmcnt(0)")
    k("v_readfirstlane_b32 s56, v12")
    k("s_cmp_ge_u32 s56, 16")
    k("s_cbranch_scc1 k4_ready")
    k("s_sleep 1")
    k("s_cmp_lt_u32 s55, 0x40000")
    k("s_cbranch_scc1 k4_poll")
    k.label("k4_ready")
    k("s_lshl_b32 s48, s33, 14")
    k("s_add_u32 s48, s48, s49")
    k("v_and_b32 v12, 3, v1")
    k("v_lshl_add_u32 v10, v12, 12, v10")
    L = TMP
    for i in range(4):
        bload(k, so, vr(L + 4 * i, 4), 4, "v10", 24, STATS + 1024 * i, base=48, mods=" sc1")
    k("s_waitcnt vmcnt(0)")
    for i in (1, 2, 3):
        for h2 in range(2):
            k("v_pk_add_f32 %s, %s, %s" % (vr(L + 2 * h2, 2), vr(L + 2 * h2, 2), vr(L + 4 * i + 2 * h2, 2)))
    for qp in ("[1,0,3,2]", "[2,3,0,1]"):
        for m in range(4):
            k("v_add_f32 v%d, v%d, v%d quad_perm:%s" % (L + m, L + m, L + m, qp))
    inv = f32hex(1.0 / 864)
    for e in range(2):
        k("v_mul_f32 v%d, %s, v%d" % (L + e, inv, L + e))
        k("v_mul_f32 v%d, %s, v%d" % (L + 2 + e, inv, L + 2 + e))
        k("v_fma_f32 v%d, -v%d, v%d, v%d" % (L + 2 + e, L + e, L + e, L + 2 + e))
        k("v_max_f32 v%d, 0, v%d" % (L + 2 + e, L + 2 + e))
    stats_to_scale(k, [(L + e, L + 2 + e, L + 4 + e) for e in range(2)])
    k("s_lshl_b32 s53, s41, 16")
    k("s_lshl_b32 s54, s52, 10")
    k("s_add_u32 s53, s53, s54")
    for u in range(4):
        if u == 3:
            k("s_cmp_eq_u32 s42, 3")
            k.settle()
            k("s_cbranch_scc1 k4_end")
        for e in range(2):
            for r in range(4):
                a = D2 + (e * 4 + u) * 4 + r
                k("v_subrev_f32 v%d, v%d, v%d row_newbcast:%d" % (a, L + e, a, 4 * r))
        for e in range(2):
            for hh in range(2):
                a = D2 + (e * 4 + u) * 4 + 2 * hh
                t = L + 8 + e * 2 + hh
                k("v_cvt_pk_bf16_f32 v%d, v%d, v%d" % (t, a, a + 1))
                k("v_lshlrev_b32 v%d, 16, v%d" % (a, t))
                k("v_and_b32 v%d, 0xffff0000, v%d" % (a + 1, t))
        for e in range(2):
            for r in range(4):
                a = D2 + (e * 4 + u) * 4 + r
                k("v_mul_f32 v%d, v%d, v%d row_newbcast:%d" % (a, L + 2 + e, a, 4 * r))
        for e in range(2):
            for hh in range(2):
                a = D2 + (e * 4 + u) * 4 + 2 * hh
                k("v_cvt_pk_bf16_f32 v%d, v%d, v%d" % (ZP + u * 4 + e * 2 + hh, a, a + 1))
        bstore(k, so, vr(ZP + u * 4, 4), 4, "v3", 24, Z2N + u * 65536, base=53)
    k.label("k4_end")
    k("s_endpgm")
    return k, (256, 256, 163840)


def gen_all():
    out = [gen_k4()]
    try:
        import k5
        out += k5.gen_all()
    except ImportError:
        pass
    return out
```

```python
from common import *
from k4 import rowperm, BIG


def wgmap(k):
    k("s_bfe_u32 s33, s2, 0x20001")
    k("s_lshl_b32 s33, s33, 3")
    k("s_lshr_b32 s34, s2, 5")
    k("s_add_u32 s33, s33, s34")
    k("s_and_b32 s34, s2, 1")
    k("s_lshl_b32 s34, s34, 2")
    k("s_bfe_u32 s35, s2, 0x20003")
    k("s_add_u32 s34, s34, s35")


def lanes(k):
    k("v_and_b32 v1, 63, v0")
    k("v_lshrrev_b32 v2, 6, v0")
    k("v_lshlrev_b32 v3, 4, v1")
    k("v_readfirstlane_b32 s32, v2")
    k("v_lshrrev_b32 v4, 4, v1")
    k("v_and_b32 v5, 15, v1")


def lds_reduce(k, name, nacc, accreg, RD):
    for w in range(4):
        if w < 3:
            k("s_cmp_lg_u32 s32, %d" % w)
            k.settle()
            k("s_cbranch_scc1 %s_w%d" % (name, w + 1))
        for mt in range(4):
            if mt == w:
                continue
            sl = w if w < mt else w - 1
            for i in range(nacc):
                off = ((mt * 3 + sl) * nacc + i) * 1024
                k("ds_write_b128 v%d, %s offset:%d" % ((3, 14)[off >> 16], vr(accreg(mt, i), 4), off & 0xffff))
        for i in range(nacc):
            for q in range(4):
                k("v_mov_b32 v%d, v%d" % (RD + 4 * i + q, accreg(w, i) + q))
        if w < 3:
            k.settle()
            k("s_branch %s_wd" % name)
            k.label("%s_w%d" % (name, w + 1))
    k.label("%s_wd" % name)
    k("s_mul_i32 s36, s32, %d" % (3 * nacc * 1024))
    k("v_add_u32 v15, s36, v3")
    k("s_waitcnt lgkmcnt(0)")
    k("s_barrier")


def gen_k5():
    k = Kern("k5_kernel")
    so = SOff(k, 40)
    k("s_cmp_ge_u32 s2, 256")
    k("s_cbranch_scc1 k5_end")
    k("s_load_dwordx4 s[4:7], s[0:1], 40")
    k("s_load_dwordx2 s[10:11], s[0:1], 80")
    lanes(k)
    wgmap(k)
    k("s_mul_i32 s35, s34, 7")
    k("s_mul_i32 s36, s34, 6")
    k("s_add_u32 s36, s36, 6")
    k("s_cmp_lt_u32 s34, 6")
    k("s_cselect_b32 s41, s35, s36")
    k("s_cselect_b32 s42, 0, 0x%x" % BIG)
    rowperm(k, 6, 5, 7)
    k("s_lshl_b32 s35, s33, 6")
    k("v_add_u32 v10, s35, v6")
    k("v_lshlrev_b32 v6, 12, v10")
    k("v_lshl_add_u32 v6, v4, 4, v6")
    k("s_lshl_b32 s35, s32, 10")
    k("v_add_u32 v6, s35, v6")
    k("v_add_u32 v7, %d, v6" % (4 * 4096))
    k("v_add_u32 v8, %d, v6" % (32 * 4096))
    k("v_add_u32 v9, %d, v6" % (36 * 4096))
    k("s_lshl_b32 s35, s41, 16")
    k("s_lshl_b32 s36, s32, 14")
    k("s_add_u32 s35, s35, s36")
    k("v_add_u32 v11, s35, v3")
    k("v_add_u32 v12, s42, v11")
    k("v_add_u32 v14, 0x10000, v3")
    for u in range(7):
        k("s_mov_b32 s%d, %d" % (60 + u, u * 65536))
    k("s_waitcnt lgkmcnt(0)")
    srd(k, 12, 4, 0, 2048 * 4096)
    srd(k, 16, 10, Z2N, 54 * 65536)
    srd(k, 20, 6, 0, 4096)
    srd(k, 24, 10, 0, WS_END)
    NST = 5
    ACC = 16
    def issue(ks):
        st = ks % NST
        k.tag = "ks%d" % ks
        if ks % 4 == 0 and ks > 0:
            for u in range(7):
                k("s_add_u32 s%d, s%d, 4096" % (60 + u, 60 + u))
        for mt in range(4):
            k("buffer_load_dwordx4 %s, v%d, s[12:15], 0 offen offset:%d" % (ar(st * 44 + 28 + mt * 4, 4), 6 + mt, 64 * ks))
        for u in range(7):
            k("buffer_load_dwordx4 %s, v%d, s[16:19], s%d offen offset:%d" % (ar(st * 44 + u * 4, 4), 12 if u == 6 else 11, 60 + u, (ks % 4) * 1024))
    for ks in range(NST):
        issue(ks)
    for ks in range(16):
        st = ks % NST
        k.wait("ks%d" % ks)
        for u in range(7):
            for mt in range(4):
                d = ACC + (mt * 7 + u) * 4
                k("v_mfma_f32_16x16x32_bf16 %s, %s, %s, %s" % (vr(d, 4), ar(st * 44 + u * 4, 4), ar(st * 44 + 28 + mt * 4, 4),
                                                           "0" if ks == 0 else vr(d, 4)))
        if ks + NST < 16:
            issue(ks + NST)
    k("s_lshl_b32 s43, s33, 2")
    k("s_add_u32 s43, s43, s32")
    k("s_mul_i32 s44, s43, %d" % (54 * 512))
    k("s_lshl_b32 s45, s41, 9")
    k("s_add_u32 s44, s44, s45")
    k("v_lshlrev_b32 v13, 3, v1")
    ZR = 128
    k.tag = "z1"
    for u in range(7):
        bload(k, so, vr(ZR + 2 * u, 2), 2, "v13", 24, Z1 + u * 512, base=44)
    k("s_lshr_b32 s45, s32, 1")
    k("s_lshl_b32 s45, s45, 5")
    k("s_and_b32 s46, s32, 1")
    k("s_lshl_b32 s46, s46, 2")
    k("s_add_u32 s45, s45, s46")
    k("v_add_u32 v10, s45, v10")
    k("v_lshlrev_b32 v10, 1, v10")
    k("buffer_load_ushort v2, v10, s[20:23], 0 offen")
    RD = 144
    lds_reduce(k, "k5r", 7, lambda mt, i: ACC + (mt * 7 + i) * 4, RD)
    T = 16
    for sl in range(3):
        for i in range(7):
            k("ds_read_b128 %s, v15 offset:%d" % (vr(T + (sl * 7 + i) * 4, 4), (sl * 7 + i) * 1024))
    for sl in range(3):
        k("s_waitcnt lgkmcnt(%d)" % min(15, 14 - 7 * sl))
        for i in range(7):
            for h2 in range(2):
                k("v_pk_add_f32 %s, %s, %s" % (vr(RD + 4 * i + 2 * h2, 2), vr(RD + 4 * i + 2 * h2, 2), vr(T + (sl * 7 + i) * 4 + 2 * h2, 2)))
    k("s_waitcnt vmcnt(0)")
    k("v_lshlrev_b32 v2, 16, v2")
    k("s_mul_i32 s44, s43, %d" % (27 * 1024))
    k("v_add_u32 v12, s42, v3")
    for u in range(7):
        r = RD + 4 * u
        t = T + 8 * u
        for h2 in range(2):
            a = r + 2 * h2
            k("v_cvt_pk_bf16_f32 v%d, v%d, v%d" % (t, a, a + 1))
            k("v_lshlrev_b32 v%d, 16, v%d" % (a, t))
            k("v_and_b32 v%d, 0xffff0000, v%d" % (a + 1, t))
            k("v_add_f32 v%d, v%d, v2" % (a, a))
            k("v_add_f32 v%d, v%d, v2" % (a + 1, a + 1))
            k("v_cvt_pk_bf16_f32 v%d, v%d, v%d" % (t, a, a + 1))
            k("v_lshlrev_b32 v%d, 16, v%d" % (a, t))
            k("v_and_b32 v%d, 0xffff0000, v%d" % (a + 1, t))
            k("v_lshlrev_b32 v%d, 16, v%d" % (t + 1, ZR + 2 * u + h2))
            k("v_and_b32 v%d, 0xffff0000, v%d" % (t + 2, ZR + 2 * u + h2))
            k("v_mul_f32 v%d, v%d, v%d" % (a, a, t + 1))
            k("v_mul_f32 v%d, v%d, v%d" % (a + 1, a + 1, t + 2))
            k("v_cvt_pk_bf16_f32 v%d, v%d, v%d" % (t + 4 + h2, a, a + 1))
        k("s_add_u32 s45, s41, %d" % u)
        k("s_lshr_b32 s46, s45, 1")
        k("s_lshl_b32 s46, s46, 10")
        k("s_and_b32 s45, s45, 1")
        k("s_lshl_b32 s45, s45, 3")
        k("s_add_u32 s45, s45, s46")
        k("s_add_u32 s45, s45, s44")
        k("s_add_u32 s45, s45, 0x%x" % UF)
        k("buffer_store_dwordx2 %s, v%d, s[24:27], s45 offen" % (vr(t + 4, 2), 12 if u == 6 else 3))
    k.label("k5_end")
    k("s_endpgm")
    return k, (256, 256, 84 * 1024)


def gen_k6():
    k = Kern("k6_kernel")
    so = SOff(k, 40)
    k("s_cmp_ge_u32 s2, 256")
    k("s_cbranch_scc1 k6_end")
    k("s_load_dwordx2 s[4:5], s[0:1], 64")
    k("s_load_dwordx2 s[10:11], s[0:1], 80")
    lanes(k)
    wgmap(k)
    k("s_mul_i32 s35, s33, %d" % (4 * 27 * 1024))
    k("s_mul_i32 s36, s32, %d" % (7 * 1024))
    k("s_add_u32 s35, s35, s36")
    k("v_add_u32 v6, s35, v3")
    k("s_mul_i32 s35, s34, %d" % (5 * 27 * 1024))
    k("s_add_u32 s35, s35, s36")
    k("v_add_u32 v7, s35, v3")
    k("s_cmp_eq_u32 s32, 3")
    k("s_cselect_b32 s42, 0x%x, 0" % BIG)
    k("v_add_u32 v8, s42, v6")
    k("v_add_u32 v9, s42, v7")
    k("v_add_u32 v14, 0x10000, v3")
    k("s_waitcnt lgkmcnt(0)")
    srd(k, 12, 10, UF, 128 * 27 * 1024)
    srd(k, 16, 10, WOUTF, 40 * 27 * 1024)
    srd(k, 20, 4, 0, 2048 * 1280)
    srd(k, 24, 10, HB, 2048 * 1280)
    ACC = 16
    for i in range(7):
        k.tag = "ks%d" % i
        for mt in range(4):
            bload(k, so, ar(i * 36 + mt * 4, 4), 4, "v8" if i == 6 else "v6", 12, (mt * 27 + i) * 1024)
        for ud in range(5):
            bload(k, so, ar(i * 36 + 16 + ud * 4, 4), 4, "v9" if i == 6 else "v7", 16, (ud * 27 + i) * 1024)
    rowperm(k, 10, 5, 11)
    k("s_lshl_b32 s35, s33, 6")
    k("s_lshr_b32 s45, s32, 1")
    k("s_lshl_b32 s45, s45, 5")
    k("s_and_b32 s46, s32, 1")
    k("s_lshl_b32 s46, s46, 2")
    k("s_add_u32 s45, s45, s46")
    k("s_add_u32 s35, s35, s45")
    k("v_add_u32 v10, s35, v10")
    k("v_mul_u32_u24 v10, 1280, v10")
    k("v_mad_u32_u24 v10, v4, 40, v10")
    k("s_mul_i32 s43, s34, 160")
    for i in range(7):
        k.wait("ks%d" % i)
        for ud in range(5):
            for mt in range(4):
                d = ACC + (mt * 5 + ud) * 4
                k("v_mfma_f32_16x16x32_bf16 %s, %s, %s, %s" % (vr(d, 4), ar(i * 36 + 16 + ud * 4, 4), ar(i * 36 + mt * 4, 4),
                                                           "0" if i == 0 else vr(d, 4)))
        if i == 0:
            HR = 96
            k.tag = "h"
            k("buffer_load_dwordx4 %s, v10, s[24:27], s43 offen" % vr(HR, 4))
            k("buffer_load_dwordx4 %s, v10, s[24:27], s43 offen offset:16" % vr(HR + 4, 4))
            k("buffer_load_dwordx2 %s, v10, s[24:27], s43 offen offset:32" % vr(HR + 8, 2))
    RD = 108
    lds_reduce(k, "k6r", 5, lambda mt, i: ACC + (mt * 5 + i) * 4, RD)
    T = 16
    for sl in range(3):
        for i in range(5):
            k("ds_read_b128 %s, v15 offset:%d" % (vr(T + (sl * 5 + i) * 4, 4), (sl * 5 + i) * 1024))
    for sl in range(3):
        k("s_waitcnt lgkmcnt(%d)" % (10 - 5 * sl))
        for i in range(5):
            for h2 in range(2):
                k("v_pk_add_f32 %s, %s, %s" % (vr(RD + 4 * i + 2 * h2, 2), vr(RD + 4 * i + 2 * h2, 2), vr(T + (sl * 5 + i) * 4 + 2 * h2, 2)))
    k("s_waitcnt vmcnt(0)")
    O = 128
    for p in range(10):
        a = RD + 2 * p
        t = T + 4 * p
        k("v_cvt_pk_bf16_f32 v%d, v%d, v%d" % (t, a, a + 1))
        k("v_lshlrev_b32 v%d, 16, v%d" % (a, t))
        k("v_and_b32 v%d, 0xffff0000, v%d" % (a + 1, t))
        k("v_lshlrev_b32 v%d, 16, v%d" % (t + 1, HR + p))
        k("v_and_b32 v%d, 0xffff0000, v%d" % (t + 2, HR + p))
        k("v_add_f32 v%d, v%d, v%d" % (a, a, t + 1))
        k("v_add_f32 v%d, v%d, v%d" % (a + 1, a + 1, t + 2))
        k("v_cvt_pk_bf16_f32 v%d, v%d, v%d" % (O + p, a, a + 1))
    k("buffer_store_dwordx4 %s, v10, s[20:23], s43 offen" % vr(O, 4))
    k("buffer_store_dwordx4 %s, v10, s[20:23], s43 offen offset:16" % vr(O + 4, 4))
    k("buffer_store_dwordx2 %s, v10, s[20:23], s43 offen offset:32" % vr(O + 8, 2))
    k.label("k6_end")
    k("s_endpgm")
    return k, (256, 256, 60 * 1024)


def gen_all():
    return [gen_k5(), gen_k6()]
```

```python
import numpy as np

LANES = np.arange(64)
G = LANES >> 4
C = LANES & 15


def f32_to_bf16_bits(x):
    x = np.atleast_1d(np.asarray(x, dtype=np.float32))
    u = x.view(np.uint32).astype(np.int64)
    r = (u + 0x7FFF + ((u >> 16) & 1)) >> 16
    return (r & 0xFFFF).astype(np.uint16)


def bf16_bits_to_f32(b):
    return (np.atleast_1d(np.asarray(b)).astype(np.uint32) << np.uint32(16)).view(np.float32)


def bf16_round(x):
    return bf16_bits_to_f32(f32_to_bf16_bits(x))


def f16_round(x):
    return np.asarray(x, dtype=np.float32).astype(np.float16).astype(np.float32)


def frag_bits_f16(fr):
    return np.asarray(fr, dtype=np.float64).astype(np.float16).view(np.uint16)


def frag_bits_bf16(fr):
    return f32_to_bf16_bits(np.asarray(fr, dtype=np.float32))


def mfma(a, b, c=None):
    A = np.zeros((16, 32), np.float64)
    B = np.zeros((32, 16), np.float64)
    for l in range(64):
        A[l & 15, 8 * (l >> 4):8 * (l >> 4) + 8] = a[l]
        B[8 * (l >> 4):8 * (l >> 4) + 8, l & 15] = b[l]
    D = A @ B
    out = np.zeros((64, 4), np.float64)
    for l in range(64):
        out[l] = D[4 * (l >> 4):4 * (l >> 4) + 4, l & 15]
    if c is not None:
        out = out + c
    return out.astype(np.float32)


TWO_PI = 2 * np.pi

A1 = 1 / np.sqrt(20.0)
A3 = 1 / np.sqrt(32.0)


def k1_B1():
    out = np.zeros((2, 2, 64, 8), np.float32)
    for l in range(64):
        g, c = l >> 4, l & 15
        if c > 10:
            continue
        for j in range(5):
            n1 = 5 * g + j
            th = TWO_PI * ((n1 * c) % 20) / 20
            vals = (np.cos(th) * A1, -np.sin(th) * A1)
            for cp in range(2):
                v = np.float32(vals[cp])
                hi = bf16_round(v)[0]
                lo = bf16_round(np.float32(vals[cp] - float(hi)))[0]
                out[cp, 0, l, j] = hi
                out[cp, 1, l, j] = lo
    return out


def k1_tw():
    out = np.zeros((64, 2, 4, 2), np.float32)
    for l in range(64):
        g, c = l >> 4, l & 15
        for p in range(2):
            for r in range(4):
                n2 = 2 * (4 * g + r) + p
                th = TWO_PI * ((n2 * c) % 640) / 640
                out[l, p, r] = (np.cos(th), -np.sin(th))
    return out


def k1_G3():
    out = np.zeros((4, 2, 64, 8), np.float64)
    for t in range(4):
        for p in range(2):
            for l in range(64):
                g, m = l >> 4, l & 15
                k2 = 8 * t + 2 * (m >> 2) + ((m & 3) >> 1)
                cp = m & 1
                for r in range(4):
                    n2 = 2 * (4 * g + r) + p
                    th = TWO_PI * ((n2 * k2) % 32) / 32
                    if cp == 0:
                        v = (np.cos(th), np.sin(th))
                    else:
                        v = (-np.sin(th), np.cos(th))
                        if k2 >= 16:
                            v = (-v[0], -v[1])
                    out[t, p, l, 2 * r] = v[0] * A3
                    out[t, p, l, 2 * r + 1] = v[1] * A3
    return out


def k1_outcol():
    out = -np.ones((64, 4, 2), np.int64)
    for l in range(64):
        g, c = l >> 4, l & 15
        if c > 10:
            continue
        for t in range(4):
            for pp in range(2):
                k2 = 8 * t + 2 * g + pp
                kk = c + 20 * k2
                if c == 0 and k2 > 16:
                    continue
                if c == 10 and k2 >= 16:
                    continue
                out[l, t, pp] = kk if kk <= 320 else 640 - kk
    return out


def emu_k1_row(xn):
    B1 = k1_B1()
    tw = k1_tw()
    G3 = f16_round(k1_G3())
    oc = k1_outcol()
    P = []
    for p in range(2):
        a = np.zeros((64, 8), np.float32)
        for l in range(64):
            g, c = l >> 4, l & 15
            for j in range(5):
                a[l, j] = xn[32 * (5 * g + j) + 2 * c + p]
        dre = mfma(a, B1[0, 1], mfma(a, B1[0, 0]))
        dim = mfma(a, B1[1, 1], mfma(a, B1[1, 0]))
        pk = np.zeros((64, 8), np.float32)
        for r in range(4):
            wr, wi = tw[:, p, r, 0], tw[:, p, r, 1]
            pk[:, 2 * r] = f16_round(dre[:, r] * wr - dim[:, r] * wi)
            pk[:, 2 * r + 1] = f16_round(dre[:, r] * wi + dim[:, r] * wr)
        P.append(pk)
    X = np.zeros((321, 2), np.float32)
    for t in range(4):
        d = mfma(G3[t, 1], P[1], mfma(G3[t, 0], P[0]))
        for l in range(64):
            for pp in range(2):
                col = oc[l, t, pp]
                if col >= 0:
                    X[col, 0] = f16_round(d[l, 2 * pp])
                    X[col, 1] = f16_round(d[l, 2 * pp + 1])
    return X


S8 = 1 / 8.0
S32 = 1 / np.sqrt(32.0)


def k2_F1():
    out = np.zeros((4, 4, 2, 64, 8), np.float64)
    for w in range(4):
        for ks in range(4):
            for l in range(64):
                g, c = l >> 4, l & 15
                k1 = 16 * w + c
                for q in range(4):
                    n1 = 16 * ks + 4 * g + q
                    th = TWO_PI * ((n1 * k1) % 64) / 64
                    out[w, ks, 0, l, 2 * q] = np.cos(th) * S8
                    out[w, ks, 0, l, 2 * q + 1] = np.sin(th) * S8
                    out[w, ks, 1, l, 2 * q] = -np.sin(th) * S8
                    out[w, ks, 1, l, 2 * q + 1] = np.cos(th) * S8
    return out


def k2_tw1():
    out = np.zeros((4, 64, 2, 4, 2), np.float32)
    for w in range(4):
        for l in range(64):
            g, c = l >> 4, l & 15
            for mt in range(2):
                for r in range(4):
                    n2 = 16 * mt + 4 * g + r
                    th = TWO_PI * ((n2 * (16 * w + c)) % 2048) / 2048
                    out[w, l, mt, r] = (np.cos(th), -np.sin(th))
    return out


def k2_G3():
    out = np.zeros((4, 2, 64, 8), np.float64)
    for t in range(4):
        for mt in range(2):
            for l in range(64):
                g, m = l >> 4, l & 15
                k2 = 8 * t + 2 * (m >> 2) + ((m & 3) >> 1)
                cp = m & 1
                for r in range(4):
                    n2 = 16 * mt + 4 * g + r
                    th = TWO_PI * ((n2 * k2) % 32) / 32
                    v = (np.cos(th), np.sin(th)) if cp == 0 else (-np.sin(th), np.cos(th))
                    out[t, mt, l, 2 * r] = v[0] * S32
                    out[t, mt, l, 2 * r + 1] = v[1] * S32
    return out


def k2_G1i():
    out = np.zeros((2, 2, 2, 64, 8), np.float64)
    for u in range(2):
        for at in range(2):
            for l in range(64):
                g, c = l >> 4, l & 15
                a = 16 * at + c
                for e in range(4):
                    k2 = 8 * (2 * u + (e >> 1)) + 2 * g + (e & 1)
                    th = TWO_PI * ((a * k2) % 32) / 32
                    out[u, at, 0, l, 2 * e] = np.cos(th) * S32
                    out[u, at, 0, l, 2 * e + 1] = -np.sin(th) * S32
                    out[u, at, 1, l, 2 * e] = np.sin(th) * S32
                    out[u, at, 1, l, 2 * e + 1] = np.cos(th) * S32
    return out


def k2_tw2():
    out = np.zeros((4, 64, 2, 4, 2), np.float32)
    for w in range(4):
        for l in range(64):
            g, c = l >> 4, l & 15
            for at in range(2):
                for r in range(4):
                    th = TWO_PI * (((16 * at + c) * (16 * w + 4 * g + r)) % 2048) / 2048
                    out[w, l, at, r] = (np.cos(th), np.sin(th))
    return out


def k2_F3i():
    out = np.zeros((2, 4, 4, 64, 8), np.float64)
    for bh in range(2):
        for t in range(4):
            for kw in range(4):
                for l in range(64):
                    g, m = l >> 4, l & 15
                    b = 32 * bh + 8 * t + 2 * (m >> 2) + ((m & 3) >> 1)
                    cp = m & 1
                    for r in range(4):
                        k1 = 16 * kw + 4 * g + r
                        th = TWO_PI * ((b * k1) % 64) / 64
                        v = (np.cos(th), -np.sin(th)) if cp == 0 else (np.sin(th), np.cos(th))
                        out[bh, t, kw, l, 2 * r] = v[0] * S8
                        out[bh, t, kw, l, 2 * r + 1] = v[1] * S8
    return out


_K2C = {}


def emu_k2_col(X, Wc):
    if not _K2C:
        _K2C.update(F1=f16_round(k2_F1()), tw1=k2_tw1(), G3=f16_round(k2_G3()), G1i=f16_round(k2_G1i()),
                    tw2=k2_tw2(), F3i=f16_round(k2_F3i()))
    F1, tw1, G3, G1i, tw2, F3i = (_K2C[k] for k in ("F1", "tw1", "G3", "G1i", "tw2", "F3i"))
    Af = np.zeros((2, 4, 64, 8), np.float32)
    for mt in range(2):
        for ks in range(4):
            for l in range(64):
                g, c = l >> 4, l & 15
                for q in range(4):
                    s = 32 * (16 * ks + 4 * g + q) + 16 * mt + c
                    Af[mt, ks, l, 2 * q:2 * q + 2] = X[s]
    lds = np.zeros((4, 2, 64, 8), np.float32)
    for w in range(4):
        P1 = np.zeros((2, 64, 8), np.float32)
        for mt in range(2):
            d = [None, None]
            for cp in range(2):
                acc = None
                for ks in range(4):
                    acc = mfma(Af[mt, ks], F1[w, ks, cp], acc)
                d[cp] = acc
            for r in range(4):
                wr, wi = tw1[w, :, mt, r, 0], tw1[w, :, mt, r, 1]
                P1[mt, :, 2 * r] = f16_round(d[0][:, r] * wr - d[1][:, r] * wi)
                P1[mt, :, 2 * r + 1] = f16_round(d[0][:, r] * wi + d[1][:, r] * wr)
        P3 = np.zeros((4, 64, 4), np.float32)
        for t in range(4):
            d = mfma(G3[t, 1], P1[1], mfma(G3[t, 0], P1[0]))
            for pp in range(2):
                k = 16 * w + C + 64 * (8 * t + 2 * G + pp)
                wr, wi = Wc[k, 0], Wc[k, 1]
                xr, xi = d[:, 2 * pp], d[:, 2 * pp + 1]
                P3[t, :, 2 * pp] = f16_round(xr * wr - xi * wi)
                P3[t, :, 2 * pp + 1] = f16_round(xr * wi + xi * wr)
        Au = [np.concatenate([P3[2 * u], P3[2 * u + 1]], axis=1) for u in range(2)]
        for at in range(2):
            d = [mfma(Au[1], G1i[1, at, cp], mfma(Au[0], G1i[0, at, cp])) for cp in range(2)]
            for r in range(4):
                wr, wi = tw2[w, :, at, r, 0], tw2[w, :, at, r, 1]
                lds[w, at, :, 2 * r] = f16_round(d[0][:, r] * wr - d[1][:, r] * wi)
                lds[w, at, :, 2 * r + 1] = f16_round(d[0][:, r] * wi + d[1][:, r] * wr)
    y = np.zeros((2048, 2), np.float32)
    for w in range(4):
        at, bh = w & 1, w >> 1
        for t in range(4):
            acc = None
            for kw in range(4):
                acc = mfma(F3i[bh, t, kw], lds[kw, at], acc)
            for pp in range(2):
                s = 16 * at + C + 32 * (32 * bh + 8 * t + 2 * G + pp)
                y[s, 0] = f16_round(acc[:, 2 * pp])
                y[s, 1] = f16_round(acc[:, 2 * pp + 1])
    return y


B1S = 1 / np.sqrt(32.0)
B3S = 1 / np.sqrt(20.0)


def k3_H1():
    out = np.zeros((2, 2, 2, 64, 8), np.float64)
    for u in range(2):
        sg = 1.0 if u == 0 else -1.0
        for at in range(2):
            for l in range(64):
                g, c = l >> 4, l & 15
                a = 2 * c + at
                for q in range(4):
                    k2 = 16 * u + 4 * g + q
                    th = TWO_PI * ((a * k2) % 32) / 32
                    out[u, at, 0, l, 2 * q] = np.cos(th) * B1S
                    out[u, at, 0, l, 2 * q + 1] = -np.sin(th) * B1S * sg
                    out[u, at, 1, l, 2 * q] = np.sin(th) * B1S
                    out[u, at, 1, l, 2 * q + 1] = np.cos(th) * B1S * sg
    return out


def k3_tw():
    out = np.zeros((64, 2, 4, 2), np.float32)
    for l in range(64):
        g, c = l >> 4, l & 15
        for at in range(2):
            for r in range(4):
                k1 = 4 * g + r
                wgt = 0.0 if k1 > 10 else (1.0 if k1 in (0, 10) else 2.0)
                th = TWO_PI * ((k1 * (2 * c + at)) % 640) / 640
                out[l, at, r] = (wgt * np.cos(th), wgt * np.sin(th))
    return out


def k3_H3():
    out = np.zeros((2, 64, 8), np.float64)
    for bt in range(2):
        for l in range(64):
            g, m = l >> 4, l & 15
            if bt == 0:
                b = 5 * (m >> 2) + (m & 3)
            else:
                if m & 3:
                    continue
                b = 5 * (m >> 2) + 4
            for r in range(4):
                k1 = 4 * g + r
                if k1 > 10:
                    continue
                th = TWO_PI * ((k1 * b) % 20) / 20
                out[bt, l, 2 * r] = np.cos(th) * B3S
                out[bt, l, 2 * r + 1] = -np.sin(th) * B3S
    return out


def k3_slotcol(k1, k2):
    kk = k1 + 20 * k2
    return kk if kk <= 320 else 640 - kk


def emu_k3_row(Y):
    H1 = f16_round(k3_H1())
    tw = k3_tw()
    H3 = f16_round(k3_H3())
    Au = np.zeros((2, 64, 8), np.float32)
    for u in range(2):
        for l in range(64):
            g, c = l >> 4, min(l & 15, 10)
            for q in range(4):
                Au[u, l, 2 * q:2 * q + 2] = Y[k3_slotcol(c, 16 * u + 4 * g + q)]
    y = np.zeros(640, np.float32)
    for at in range(2):
        d = [mfma(Au[1], H1[1, at, cp], mfma(Au[0], H1[0, at, cp])) for cp in range(2)]
        P = np.zeros((64, 8), np.float32)
        for r in range(4):
            wr, wi = tw[:, at, r, 0], tw[:, at, r, 1]
            P[:, 2 * r] = f16_round(d[0][:, r] * wr - d[1][:, r] * wi)
            P[:, 2 * r + 1] = f16_round(d[0][:, r] * wi + d[1][:, r] * wr)
        d0 = mfma(H3[0], P)
        d1 = mfma(H3[1], P)
        for l in range(64):
            g, c = l >> 4, l & 15
            for i in range(5):
                v = d0[l, i] if i < 4 else d1[l, 0]
                y[32 * (5 * g + i) + 2 * c + at] = v
    return y


if __name__ == "__main__":
    rng = np.random.default_rng(0)
    xn = bf16_round(rng.standard_normal(640).astype(np.float32))
    X = emu_k1_row(xn)
    ref = np.fft.rfft(xn.astype(np.float64)) / np.sqrt(640)
    err = np.abs((X[:, 0] + 1j * X[:, 1]) - ref)
    print("k1 err max", err.max(), "rms", np.sqrt((err ** 2).mean()))
    Xc = f16_round(rng.standard_normal((2048, 2)).astype(np.float32))
    Wc = bf16_round(rng.standard_normal((2048, 2)).astype(np.float32) * 0.3)
    y = emu_k2_col(Xc, Wc)
    xc = Xc[:, 0] + 1j * Xc[:, 1]
    ref = np.fft.ifft(np.fft.fft(xc.astype(np.complex128)) * (Wc[:, 0] + 1j * Wc[:, 1]))
    err = np.abs((y[:, 0] + 1j * y[:, 1]) - ref)
    print("k2 err max", err.max(), "rms", np.sqrt((err ** 2).mean()), "ref rms", np.sqrt((np.abs(ref) ** 2).mean()))
    Y = f16_round(rng.standard_normal((321, 2)).astype(np.float32))
    yy = emu_k3_row(Y)
    ref = np.fft.irfft((Y[:, 0] + 1j * Y[:, 1]).astype(np.complex128), n=640) * np.sqrt(640)
    err = np.abs(yy - ref)
    print("k3 err max", err.max(), "rms", np.sqrt((err ** 2).mean()), "ref rms", np.sqrt((ref ** 2).mean()))
```

```python
import sys, os
sys.path.insert(0, os.path.dirname(os.path.abspath(__file__)))
from common import *
import k1, k2, k3

NAME = "sequential_preLN__spectral_gfnet__mixer_gmlp__prompt"


def build(kerns, path):
    ref = open("cdna_kernels/%s.s.ref" % NAME).read().split("\n")
    head = [l for l in ref if l.startswith(";") and "@launch" not in l]
    out = list(head)
    for k, (grid, block, lds) in kerns:
        out.append("; @launch kernel=%s grid=(%d,1,1) block=(%d,1,1) lds=%d" % (k.name, grid, block, lds))
    out.append('.amdgcn_target "amdgcn-amd-amdhsa--gfx950"')
    out.append(".text")
    out.append(TB.asm())
    descs = []
    seen = set()
    for k, _ in kerns:
        if k.name in seen:
            continue
        seen.add(k.name)
        body, desc = k.text()
        out.append(body)
        descs.append(desc)
    out.append('.section .rodata,"a"')
    for d in descs:
        out.append(".p2align 6")
        out.append(d)
    open(path, "w").write("\n".join(out) + "\n")


if __name__ == "__main__":
    kerns = [k1.gen_k1(), k2.gen_k2(), k3.gen_k3()]
    try:
        import k4
        kerns += k4.gen_all()
    except ImportError:
        pass
    path = sys.argv[1] if len(sys.argv) > 1 else "cdna_kernels/%s.s" % NAME
    build(kerns, path)
    print("written", path, os.path.getsize(path))
```

```python
import sys
from gen import *
import k4
def dummy(n):
    k = Kern("dm_kernel")
    k("s_endpgm")
    return k, (256, 256, 0)
nd = int(sys.argv[1])
kerns = [k1.gen_k1(), k2.gen_k2(), k3.gen_k3()] + k4.gen_all()
d = dummy(0)
kerns = kerns + [d] * nd
build(kerns, sys.argv[2])
```

```python
import re

REG_RE = re.compile(r"^(-?)(abs\()?([vas])(\d+|\[(\d+):(\d+)\])\)?$")

TRANS = ("v_exp_f32", "v_log_f32", "v_rcp_f32", "v_rsq_f32", "v_sqrt_f32", "v_sin_f32", "v_cos_f32")


def parse_reg(tok):
    tok = tok.strip()
    if tok in ("vcc",):
        return [("s", 106), ("s", 107)]
    if tok == "vcc_lo":
        return [("s", 106)]
    if tok == "exec":
        return [("s", 126), ("s", 127)]
    if tok == "m0":
        return [("s", 124)]
    m = REG_RE.match(tok)
    if not m:
        return []
    kind = m.group(3)
    if m.group(5) is not None:
        return [(kind, i) for i in range(int(m.group(5)), int(m.group(6)) + 1)]
    return [(kind, int(m.group(4)))]


def split_ops(s):
    out, depth, cur = [], 0, ""
    for ch in s:
        if ch in "[(":
            depth += 1
        if ch in "])":
            depth -= 1
        if ch == "," and depth == 0:
            out.append(cur.strip())
            cur = ""
        else:
            cur += ch
    if cur.strip():
        out.append(cur.strip())
    return out


def mfma_passes(mn):
    if "32x32x16" in mn or "32x32x8" in mn:
        return 8
    if "16x16x32" in mn or "16x16x16" in mn:
        return 4
    raise ValueError(mn)


class Kern:
    def __init__(self, name):
        self.name = name
        self.lines = []
        self.pos = 0
        self.reset_state()
        self.maxv = -1
        self.maxa = -1
        self.maxs = -1
        self.vm = []
        self.stamps = []
        self.tag = None
        self.lg = []

    def stamp(self, name=""):
        import os
        if not os.environ.get("STAMP"):
            return
        i = len(self.stamps)
        assert i < 13
        self.stamps.append(name)
        if i == 0:
            self.ins("s_memrealtime s[96:97]")
        self.ins("s_memtime s[%d:%d]" % (70 + 2 * i, 71 + 2 * i))

    def stamp_flush(self, kidx):
        import os
        if not os.environ.get("STAMP"):
            return
        self.stamp("end")
        self.ins("s_memrealtime s[98:99]")
        self.ins("s_load_dwordx2 s[100:101], s[0:1], 80")
        self.ins("s_waitcnt lgkmcnt(0) vmcnt(0)")
        self.ins("s_add_u32 s64, s100, 0x3000000")
        self.ins("s_addc_u32 s65, s101, 0")
        self.ins("s_mov_b32 s66, 0x1000000")
        self.ins("s_mov_b32 s67, 0x20000")
        self.ins("s_lshl_b32 s68, s2, 2")
        self.ins("s_add_u32 s68, s68, s32")
        self.ins("s_lshl_b32 s68, s68, 7")
        self.ins("s_add_u32 s68, s68, %d" % (kidx * 0x40000))
        self.ins("v_mov_b32 v1, s68")
        regs = [70 + 2 * i for i in range(len(self.stamps))]
        for i, r in enumerate(regs):
            self.ins("v_mov_b32 v0, s%d" % r)
            self.ins("buffer_store_dword v0, v1, s[64:67], 0 offen offset:%d" % (4 * i))
        for i, r in enumerate((96, 98)):
            self.ins("v_mov_b32 v0, s%d" % r)
            self.ins("buffer_store_dword v0, v1, s[64:67], 0 offen offset:%d" % (64 + 4 * i))
        open("stamps_%d.txt" % kidx, "w").write("\n".join(self.stamps))

    def wait(self, tag):
        idx = max(i for i, t in enumerate(self.vm) if t == tag)
        n = len(self.vm) - 1 - idx
        self.ins("s_waitcnt vmcnt(%d)" % min(n, 63))

    def waitl(self, tag):
        idx = max(i for i, t in enumerate(self.lg) if t == tag)
        n = len(self.lg) - 1 - idx
        self.ins("s_waitcnt lgkmcnt(%d)" % min(n, 15))

    def reset_state(self):
        self.valu_w = {}
        self.trans_w = {}
        self.opsel_w = {}
        self.mfma_w = {}
        self.mfma_c = {}
        self.valu_sw = {}
        self.salu_m0 = -100
        self.store_d = {}
        self.valu_exec = -100
        self.dot_w = {}

    def raw(self, s):
        self.lines.append(s)

    def comment(self, s):
        self.lines.append("    ; " + s)

    def label(self, l):
        self.settle()
        self.lines.append(l + ":")

    def settle(self):
        need = self.pos
        for r, (p, ps, _, _) in self.mfma_w.items():
            need = max(need, p + {4: 8, 8: 12}[ps] + 1)
        for r, (p, ps) in self.mfma_c.items():
            need = max(need, p + {4: 3, 8: 7}[ps] + 1)
        for d in (self.valu_w, self.trans_w, self.opsel_w, self.store_d):
            for r, p in d.items():
                need = max(need, p + 2 + 1)
        for r, p in self.dot_w.items():
            need = max(need, p + 3 + 1)
        for r, p in self.valu_sw.items():
            need = max(need, p + 5 + 1)
        need = max(need, self.salu_m0 + 2, self.valu_exec + 6)
        self._pad(need)
        self.reset_state()

    def _pad(self, need):
        while self.pos < need:
            n = min(need - self.pos, 16)
            self.lines.append("    s_nop %d" % (n - 1))
            self.pos += n

    def __call__(self, text):
        for t in text.strip().split("\n"):
            t = t.split(";")[0].strip()
            if t:
                self.ins(t)

    def ins(self, text):
        parts = text.split(None, 1)
        mn = parts[0]
        rest = parts[1] if len(parts) > 1 else ""
        ops = split_ops(rest)
        mods = ""
        if ops:
            last = ops[-1].split(None, 1)
            if len(last) > 1:
                ops[-1] = last[0]
                mods = last[1]
        regs = [parse_reg(o) for o in ops]
        for rl in regs:
            for k, i in rl:
                if k == "v":
                    self.maxv = max(self.maxv, i)
                elif k == "a":
                    self.maxa = max(self.maxa, i)
                elif k == "s" and i < 102:
                    self.maxs = max(self.maxs, i)
        is_mfma = mn.startswith("v_mfma")
        is_valu = mn.startswith("v_") and not is_mfma
        is_vmem = mn.startswith(("buffer_", "global_", "flat_"))
        is_ds = mn.startswith("ds_")
        is_salu = mn.startswith("s_")
        dpp = any(x in mods for x in ("row_", "quad_perm", "wave_"))
        writes, reads = [], []
        if is_mfma:
            writes = regs[0]
            reads = regs[1] + regs[2] + regs[3]
        elif is_valu:
            if mn.startswith("v_permlane") and "swap" in mn:
                writes = regs[0] + regs[1]
                reads = regs[0] + regs[1]
            elif mn.startswith(("v_add_co", "v_sub_co", "v_addc_co", "v_subb_co", "v_mad_u64")):
                writes = regs[0] + regs[1]
                reads = sum(regs[2:], [])
            else:
                writes = regs[0]
                reads = sum(regs[1:], [])
                if mn.startswith(("v_fmac", "v_fma_mixlo", "v_fma_mixhi", "v_dot2c", "v_writelane")) or dpp:
                    reads = reads + regs[0]
                if mn.startswith("v_cndmask") and len(ops) == 3:
                    reads = reads + parse_reg("vcc")
        elif is_vmem:
            if "load" in mn and " lds" not in (" " + mods) and "_lds_" not in mn:
                writes = regs[0]
                reads = sum(regs[1:], [])
            elif "atomic" in mn and ("sc0" in mods):
                writes = regs[0]
                reads = sum(regs, [])
            else:
                reads = sum(regs, [])
        elif is_ds:
            if mn.startswith(("ds_read", "ds_bpermute", "ds_permute", "ds_swizzle")):
                writes = regs[0]
                reads = sum(regs[1:], [])
            else:
                reads = sum(regs, [])
        elif is_salu:
            if mn.startswith(("s_cmp", "s_cbranch", "s_branch", "s_waitcnt", "s_barrier", "s_nop", "s_endpgm",
                              "s_sleep", "s_setprio", "s_bitcmp")):
                reads = sum(regs, [])
            else:
                writes = regs[0] if regs else []
                reads = sum(regs[1:], [])
        need = self.pos

        def req(p, n):
            nonlocal need
            need = max(need, p + n + 1)

        vreads = [r for r in reads if r[0] in "va"]
        vwrites = [r for r in writes if r[0] in "va"]
        sreads = [r for r in reads if r[0] == "s"]
        for r in vreads + vwrites:
            if r in self.dot_w:
                req(self.dot_w[r], 3)
        if is_mfma:
            ps = mfma_passes(mn)
            d = tuple(regs[0])
            for r in regs[1] + regs[2] + regs[3]:
                if r in self.valu_w:
                    req(self.valu_w[r], 2)
            for r in regs[1] + regs[2]:
                if r in self.mfma_w:
                    p, pps, _, _ = self.mfma_w[r]
                    req(p, {4: 8, 8: 12}[pps])
            for r in regs[3]:
                if r in self.mfma_w:
                    p, pps, dt, pmn = self.mfma_w[r]
                    if dt == tuple(regs[3]) and pps == ps:
                        pass
                    else:
                        req(p, {4: 6, 8: 10}[pps])
            for r in regs[0]:
                if r in self.mfma_w and r not in regs[3]:
                    p, pps, dt, pmn = self.mfma_w[r]
                    req(p, {4: 8, 8: 12}[pps])
            req(self.valu_exec, 4)
        else:
            for r in vreads + vwrites:
                if r in self.mfma_w:
                    p, pps, _, _ = self.mfma_w[r]
                    req(p, {4: 8, 8: 12}[pps])
            if is_valu:
                for r in vwrites:
                    if r in self.mfma_c:
                        p, pps = self.mfma_c[r]
                        req(p, {4: 3, 8: 7}[pps])
                    if r in self.store_d:
                        req(self.store_d[r], 2)
                for r in vreads:
                    if r in self.trans_w and mn not in TRANS:
                        req(self.trans_w[r], 1)
                    if r in self.opsel_w:
                        req(self.opsel_w[r], 1)
                    if dpp and r in self.valu_w:
                        req(self.valu_w[r], 2)
                    if mn.startswith("v_permlane") and r in self.valu_w:
                        req(self.valu_w[r], 2)
                    if mn.startswith(("v_readlane", "v_readfirstlane")) and r in self.valu_w:
                        req(self.valu_w[r], 1)
                for r in sreads:
                    if r in self.valu_sw:
                        req(self.valu_sw[r], 4 if mn.startswith(("v_readlane", "v_writelane")) else 2)
                if dpp:
                    req(self.valu_exec, 5)
            else:
                for r in vwrites:
                    if r in self.store_d:
                        req(self.store_d[r], 1)
            if is_vmem:
                for r in sreads:
                    if r in self.valu_sw:
                        req(self.valu_sw[r], 5)
                if " lds" in (" " + mods) or "_lds_" in mn:
                    req(self.salu_m0, 1)
        self._pad(need)
        p = self.pos
        if is_vmem:
            self.vm.append(self.tag)
        if is_ds:
            self.lg.append(self.tag)
        self.lines.append("    " + text)
        self.pos += 1
        if mn == "s_nop":
            self.pos += int(ops[0])
        for r in vwrites:
            for d in (self.valu_w, self.trans_w, self.opsel_w, self.mfma_w, self.dot_w):
                d.pop(r, None)
        if is_mfma:
            for r in regs[0]:
                self.mfma_w[r] = (p, mfma_passes(mn), tuple(regs[0]), mn)
            for r in regs[3]:
                self.mfma_c[r] = (p, mfma_passes(mn))
        elif is_valu:
            for r in vwrites:
                self.valu_w[r] = p
                if mn in TRANS:
                    self.trans_w[r] = p
                if mn.startswith("v_dot"):
                    self.dot_w[r] = p
                if mn.startswith(("v_fma_mixlo", "v_fma_mixhi")) or "dst_sel" in mods or "op_sel" in mods:
                    self.opsel_w[r] = p
            for r in writes:
                if r[0] == "s":
                    self.valu_sw[r] = p
                    if r[1] in (126, 127):
                        self.valu_exec = p
        elif is_salu:
            for r in writes:
                self.valu_sw.pop(r, None)
                if r == ("s", 124):
                    self.salu_m0 = p
        if is_vmem and "store" in mn and ("x4" in mn or "x3" in mn):
            data = regs[0] if mn.startswith("buffer_") else regs[1]
            for r in data:
                self.store_d[r] = p
        if mn.startswith(("s_cbranch", "s_branch")):
            pass

    def text(self, lds_note=""):
        nv = self.maxv + 1
        acc_off = max(4, (nv + 3) // 4 * 4)
        na = self.maxa + 1
        nfv = acc_off + na if na > 0 else nv
        body = [".globl %s" % self.name, ".p2align 8", ".type %s,@function" % self.name, self.name + ":"]
        body += self.lines
        desc = """.amdhsa_kernel %s
  .amdhsa_next_free_vgpr %d
  .amdhsa_next_free_sgpr %d
  .amdhsa_accum_offset %d
  .amdhsa_group_segment_fixed_size 0
  .amdhsa_kernarg_size 88
  .amdhsa_user_sgpr_count 2
  .amdhsa_user_sgpr_kernarg_segment_ptr 1
  .amdhsa_system_sgpr_workgroup_id_x 1
  .amdhsa_float_denorm_mode_32 3
  .amdhsa_float_denorm_mode_16_64 3
.end_amdhsa_kernel""" % (self.name, max(nfv, 8), max(self.maxs + 1, 16), acc_off)
        return "\n".join(body), desc


def vr(base, n=1):
    return "v%d" % base if n == 1 else "v[%d:%d]" % (base, base + n - 1)


def ar(base, n=1):
    return "a%d" % base if n == 1 else "a[%d:%d]" % (base, base + n - 1)


def sr(base, n=1):
    return "s%d" % base if n == 1 else "s[%d:%d]" % (base, base + n - 1)
```

```python
from common import *


def gen_k1():
    k = Kern("k1_kernel")
    so = SOff(k, 40)
    k("s_cmp_ge_u32 s2, 256")
    k("s_cbranch_scc1 k1_end")
    k.stamp("start")
    k("s_load_dwordx4 s[4:7], s[0:1], 0")
    k("s_load_dwordx2 s[8:9], s[0:1], 16")
    k("s_load_dwordx2 s[10:11], s[0:1], 80")
    table_srd(k, 28, "k1")
    k("s_and_b32 s3, s2, 7")
    k("s_lshl_b32 s3, s3, 5")
    k("s_lshr_b32 s33, s2, 3")
    k("s_or_b32 s3, s3, s33")
    k("v_and_b32 v1, 63, v0")
    k("v_lshrrev_b32 v2, 6, v0")
    k("v_lshlrev_b32 v3, 4, v1")
    k("v_readfirstlane_b32 s32, v2")
    B1, TW, G3, OC = 20, 36, 52, 84
    for i in range(4):
        bload(k, so, vr(B1 + 4 * i, 4), 4, "v3", 28, TB.off["k1_B1"] + 1024 * i)
    for i in range(4):
        bload(k, so, vr(TW + 4 * i, 4), 4, "v3", 28, TB.off["k1_tw"] + 1024 * i)
    for i in range(8):
        bload(k, so, vr(G3 + 4 * i, 4), 4, "v3", 28, TB.off["k1_G3"] + 1024 * i)
    for i in range(2):
        bload(k, so, vr(OC + 4 * i, 4), 4, "v3", 28, TB.off["k1_oc"] + 1024 * i)
    k("v_lshrrev_b32 v4, 4, v1")
    k("v_mul_u32_u24 v2, 320, v4")
    k("v_and_b32 v4, 15, v1")
    k("v_lshl_add_u32 v2, v4, 2, v2")
    k("s_lshr_b32 s33, s3, 4")
    k("s_lshl_b32 s33, s33, 7")
    k("s_and_b32 s34, s3, 15")
    k("s_add_u32 s33, s33, s34")
    k("s_lshl_b32 s34, s32, 5")
    k("s_add_u32 s33, s33, s34")
    k("s_mul_i32 s33, s33, 1280")
    k("s_add_u32 s34, s33, 20480")
    k("s_lshr_b32 s35, s3, 6")
    k("s_lshl_b32 s35, s35, 4")
    k("s_and_b32 s36, s3, 15")
    k("s_add_u32 s35, s35, s36")
    k("s_bfe_u32 s36, s3, 0x20004")
    k("s_lshl_b32 s36, s36, 7")
    k("s_add_u32 s35, s35, s36")
    k("s_mul_i32 s35, s35, 642")
    k("s_add_u32 s36, s35, %d" % (64 * 642))
    k("s_add_u32 s37, s35, %d" % (512 * 642))
    k("s_add_u32 s38, s35, %d" % (576 * 642))
    k("v_and_b32 v4, 31, v1")
    k("s_lshl_b32 s39, s32, 5")
    k("v_add_u32 v4, s39, v4")
    k("v_lshrrev_b32 v5, 5, v1")
    k("v_mul_u32_u24 v6, %d, v5" % (1024 * 642))
    k("v_lshl_add_u32 v6, v4, 1, v6")
    k("v_lshlrev_b32 v7, 13, v4")
    k("v_lshl_add_u32 v7, v5, 4, v7")
    k("v_mul_u32_u24 v8, %d, v5" % (4 * 1536))
    k("v_lshl_add_u32 v8, v4, 2, v8")
    k.stamp("pre-karg")
    k("s_waitcnt lgkmcnt(0)")
    k.stamp("karg")
    srd(k, 12, 4, 0, 2048 * 1280)
    srd(k, 16, 6, 0, 2048 * 642)
    srd(k, 20, 8, 0, 2048 * 642)
    srd(k, 24, 10, 0, WS_END)
    X = 10
    for mt in range(2):
        for i in range(5):
            k("buffer_load_dword v%d, v2, s[12:15], s%d offen offset:%d" % (X + 5 * mt + i, 33 + mt, 64 * i))
    k.stamp("x issued")
    WR, WI = 92, 104
    for rnd in range(3):
        for e in range(4):
            k("buffer_load_ushort v%d, v6, s[16:19], s%d offen offset:%d" % (WR + 4 * rnd + e, 35 + e, 256 * rnd))
            k("buffer_load_ushort v%d, v6, s[20:23], s%d offen offset:%d" % (WI + 4 * rnd + e, 35 + e, 256 * rnd))
    XF = 116
    TMP = 136
    k.stamp("issued")
    k("s_waitcnt vmcnt(24)")
    k.stamp("x arrived")
    for mt in range(2):
        for i in range(5):
            k("v_lshlrev_b32 v%d, 16, v%d" % (XF + 10 * mt + i, X + 5 * mt + i))
            k("v_and_b32 v%d, 0xffff0000, v%d" % (XF + 10 * mt + 5 + i, X + 5 * mt + i))
    rows = [dict(x=[XF + 10 * mt + j for j in range(10)], tmp=[TMP + 4 * mt + j for j in range(4)]) for mt in range(2)]
    layernorm_rows(k, rows, 640, 41)
    k.stamp("LN done")
    AF = 144
    for mt in range(2):
        for p in range(2):
            a = AF + (mt * 2 + p) * 4
            x = XF + 10 * mt + 5 * p
            k("v_cvt_pk_bf16_f32 v%d, v%d, v%d" % (a, x, x + 1))
            k("v_cvt_pk_bf16_f32 v%d, v%d, v%d" % (a + 1, x + 2, x + 3))
            k("v_cvt_pk_bf16_f32 v%d, v%d, 0" % (a + 2, x + 4))
            k("v_mov_b32 v%d, 0" % (a + 3))
    D1 = 160
    for mt in range(2):
        for p in range(2):
            for hl in (1, 0):
                for cp in range(2):
                    d = D1 + ((mt * 2 + p) * 2 + cp) * 4
                    a = AF + (mt * 2 + p) * 4
                    b = B1 + (cp * 2 + hl) * 4
                    k("v_mfma_f32_16x16x32_bf16 %s, %s, %s, %s" % (vr(d, 4), vr(a, 4), vr(b, 4), "0" if hl == 1 else vr(d, 4)))
    k("s_mul_i32 s39, s32, 1536")
    for i in range(8):
        k("v_add_u32 v%d, s39, v%d" % (OC + i, OC + i))
    PF = 192
    for mt in range(2):
        for p in range(2):
            d = D1 + ((mt * 2 + p) * 2) * 4
            items = [(PF + (mt * 2 + p) * 4 + r, d + r, d + 4 + r, TW + (p * 4 + r) * 2, TW + (p * 4 + r) * 2 + 1) for r in range(4)]
            cmul_batch(k, items, [XF + j for j in range(8)])
    D3 = 208
    for mt in range(2):
        for t in range(4):
            d = D3 + (mt * 4 + t) * 4
            for p in range(2):
                k("v_mfma_f32_16x16x32_f16 %s, %s, %s, %s" % (vr(d, 4), vr(G3 + (t * 2 + p) * 4, 4), vr(PF + (mt * 2 + p) * 4, 4),
                                                          "0" if p == 0 else vr(d, 4)))
    for mt in range(2):
        for t in range(4):
            d = D3 + (mt * 4 + t) * 4
            for pp in range(2):
                o = XF + (mt * 4 + t) * 2 + pp
                k("v_cvt_pk_f16_f32 v%d, v%d, v%d" % (o, d + 2 * pp, d + 2 * pp + 1))
                k("ds_write_b32 v%d, v%d offset:%d" % (OC + t * 2 + pp, o, mt * 4 * 1536))
    k.stamp("fft done")
    k("s_waitcnt vmcnt(0)")
    k("s_lshl_b32 s39, s3, 5")
    k("v_mov_b32 v9, 0")
    for rnd in range(3):
        for e in range(4):
            r = WR + 4 * rnd + e
            k("v_lshl_or_b32 v%d, v%d, 16, v%d" % (r, WI + 4 * rnd + e, r))
            k("v_and_b32 v%d, 0x7fff7fff, v%d" % (TMP, r))
            k("v_pk_max_u16 v9, v9, v%d" % TMP)
        bstore(k, so, vr(WR + 4 * rnd, 4), 4, "v7", 24, WT + rnd * 0x100000, base=39)
    k("v_lshrrev_b32 v%d, 16, v9" % TMP)
    k("v_and_b32 v9, 0xffff, v9")
    k("v_max_u32 v9, v9, v%d" % TMP)
    wave_reduce(k, [9], "v_max_u32")
    k("v_readlane_b32 s41, v9, 63")
    k("s_lshl_b32 s42, s3, 4")
    k("s_lshl_b32 s43, s32, 2")
    k("s_add_u32 s42, s42, s43")
    k("v_mov_b32 v9, s41")
    k("v_mov_b32 v%d, s42" % TMP)
    bstore(k, so, "v9", 1, "v%d" % TMP, 24, WMAX)
    k.stamp("wprep done")
    k("s_waitcnt lgkmcnt(0)")
    k("s_barrier")
    k.stamp("barrier")
    O = 160
    for rnd in range(3):
        k("ds_read2st64_b32 %s, v8 offset0:%d offset1:%d" % (vr(O + 4 * rnd, 2), 2 * rnd, 2 * rnd + 6))
        k("ds_read2st64_b32 %s, v8 offset0:%d offset1:%d" % (vr(O + 4 * rnd + 2, 2), 2 * rnd + 12, 2 * rnd + 18))
    for rnd in range(3):
        k("s_waitcnt lgkmcnt(%d)" % (4 - 2 * rnd))
        bstore(k, so, vr(O + 4 * rnd, 4), 4, "v7", 24, XD + rnd * 0x100000, base=39)
    k.stamp_flush(0)
    k.label("k1_end")
    k("s_endpgm")
    return k, (256, 256, 8 * 1536)
```

```python
from common import *


def wscale(k, so, srd_ws, vtmp, vl16, sdst):
    k.tag = "wmax"
    bload(k, so, vr(vtmp, 4), 4, vl16, srd_ws, WMAX)


def wscale_finish(k, vtmp, sdst):
    k.wait("wmax")
    k("v_max_u32 v%d, v%d, v%d" % (vtmp, vtmp, vtmp + 1))
    k("v_max_u32 v%d, v%d, v%d" % (vtmp + 2, vtmp + 2, vtmp + 3))
    k("v_max_u32 v%d, v%d, v%d" % (vtmp, vtmp, vtmp + 2))
    wave_reduce(k, [vtmp], "v_max_u32")
    k("v_readlane_b32 s%d, v%d, 63" % (sdst, vtmp))
    k("s_lshr_b32 s%d, s%d, 7" % (sdst, sdst))
    k("s_sub_i32 s%d, 253, s%d" % (sdst, sdst))
    k("s_max_i32 s%d, s%d, 1" % (sdst, sdst))


def gen_prep(k):
    k.label("k2_prep")
    k("s_load_dwordx2 s[4:5], s[0:1], 32")
    k("s_load_dwordx2 s[6:7], s[0:1], 56")
    k("s_load_dwordx2 s[10:11], s[0:1], 80")
    k("v_and_b32 v1, 63, v0")
    k("v_lshrrev_b32 v2, 6, v0")
    k("v_lshlrev_b32 v3, 4, v1")
    k("v_readfirstlane_b32 s32, v2")
    k("v_lshrrev_b32 v4, 4, v1")
    k("v_and_b32 v5, 15, v1")
    k("s_sub_u32 s3, s2, 168")
    k("s_lshl_b32 s3, s3, 2")
    k("s_add_u32 s3, s3, s32")
    k("s_cmp_ge_u32 s3, 336")
    k("s_cbranch_scc1 k2_end2")
    k("s_waitcnt lgkmcnt(0)")
    srd(k, 24, 10, 0, WS_END)
    k("s_cmp_ge_u32 s3, 216")
    k("s_cbranch_scc1 k2_prep_out")
    srd(k, 12, 4, 0, 640 * 3456)
    k("s_lshr_b32 s33, s3, 1")
    k("s_and_b32 s34, s3, 1")
    k("s_mul_i32 s35, s34, %d" % (10 * 32 * 3456))
    k("s_lshl_b32 s36, s33, 5")
    k("s_add_u32 s35, s35, s36")
    k("s_mov_b32 s36, %d" % (32 * 3456))
    k("s_mul_i32 s37, s33, 20")
    k("s_mul_i32 s38, s34, 10")
    k("s_add_u32 s37, s37, s38")
    k("s_lshl_b32 s37, s37, 10")
    k("s_add_u32 s37, s37, 0x%x" % WINF)
    k("v_mul_u32_u24 v6, %d, v4" % (8 * 3456))
    k("v_lshl_add_u32 v8, v5, 1, v6")
    for j in range(1, 8):
        k("v_add_u32 v%d, %d, v8" % (8 + j, j * 3456))
    k.settle()
    k("s_branch k2_prep_go")
    k.label("k2_prep_out")
    srd(k, 12, 6, 0, 864 * 1280)
    k("s_sub_u32 s3, s3, 216")
    k("s_mul_hi_u32 s33, s3, 0x55555556")
    k("s_mul_i32 s34, s33, 3")
    k("s_sub_u32 s34, s3, s34")
    k("s_mul_i32 s34, s34, 9")
    k("s_min_u32 s34, s34, 17")
    k("s_mul_hi_u32 s38, s33, 0x33333334")
    k("s_mul_i32 s39, s38, 5")
    k("s_sub_u32 s39, s33, s39")
    k("s_mul_i32 s38, s38, 160")
    k("s_lshl_b32 s39, s39, 3")
    k("s_add_u32 s38, s38, s39")
    k("s_mul_i32 s35, s34, %d" % (32 * 1280))
    k("s_add_u32 s35, s35, s38")
    k("s_mov_b32 s36, %d" % (32 * 1280))
    k("s_mul_i32 s37, s33, 27")
    k("s_add_u32 s37, s37, s34")
    k("s_lshl_b32 s37, s37, 10")
    k("s_add_u32 s37, s37, 0x%x" % WOUTF)
    k("v_mul_u32_u24 v6, %d, v4" % (4 * 1280))
    k("v_lshrrev_b32 v7, 2, v5")
    k("v_mad_u32_u24 v6, v7, 40, v6")
    k("v_and_b32 v7, 3, v5")
    k("v_lshl_add_u32 v8, v7, 1, v6")
    for j in range(1, 8):
        k("v_add_u32 v%d, %d, v8" % (8 + j, (16 * (j >> 2) + (j & 3)) * 1280))
    k.label("k2_prep_go")
    R = 16
    for b in range(2):
        for i in range(5):
            for j in range(8):
                k("buffer_load_ushort v%d, v%d, s[12:15], s35 offen" % (R + i * 8 + j, 8 + j))
            k("s_add_u32 s35, s35, s36")
        for i in range(5):
            k("s_waitcnt vmcnt(%d)" % (32 - 8 * i + i))
            for j in range(4):
                k("v_lshl_or_b32 v%d, v%d, 16, v%d" % (56 + i * 4 + j, R + i * 8 + 2 * j + 1, R + i * 8 + 2 * j))
            k("buffer_store_dwordx4 %s, v3, s[24:27], s37 offen" % vr(56 + i * 4, 4))
            k("s_add_u32 s37, s37, 1024")
        if b == 0:
            k("s_waitcnt vmcnt(0)")
    k.label("k2_end2")
    k("s_endpgm")


def gen_k2():
    k = Kern("k2_kernel")
    so = SOff(k, 40)
    NC = 2
    k("s_and_b32 s3, s2, 7")
    k("s_mul_i32 s3, s3, 21")
    k("s_lshr_b32 s33, s2, 3")
    k("s_add_u32 s3, s3, s33")
    k("s_cmp_ge_u32 s2, 168")
    k("s_cbranch_scc1 k2_prep")
    k("s_cmp_ge_u32 s3, 161")
    k("s_cbranch_scc1 k2_end")
    k.stamp("start")
    k("s_load_dwordx2 s[10:11], s[0:1], 80")
    table_srd(k, 28, "k2")
    k("s_lshl_b32 s33, s3, 5")
    k("s_add_u32 s33, s33, %d" % TB.off["k2_slot"])
    k("s_load_dwordx8 s[52:59], s[28:29], s33")
    k("v_and_b32 v1, 63, v0")
    k("v_lshrrev_b32 v2, 6, v0")
    k("v_lshlrev_b32 v3, 4, v1")
    k("v_readfirstlane_b32 s32, v2")
    k("v_lshlrev_b32 v4, 5, v1")
    k("v_lshlrev_b32 v5, 5, v0")
    k("v_mul_u32_u24 v6, %d, v0" % YBLK)
    aF1, aG3, aG1, aF3 = 0, 32, 64, 96
    A, TW1, TW2, W, WM = 16, 80, 96, 112, 128
    k("s_lshl_b32 s34, s32, 13")
    k("s_lshl_b32 s35, s32, 12")
    k("s_lshr_b32 s36, s32, 1")
    k("s_lshl_b32 s36, s36, 14")
    k.tag = "F1"
    for i in range(8):
        bload(k, so, ar(aF1 + 4 * i, 4), 4, "v3", 28, TB.off["k2_F1"] + 1024 * i, base=34)
    k("s_waitcnt lgkmcnt(0)")
    k("s_mov_b32 s37, s52")
    srd(k, 24, 10, 0, WS_END)
    for c in range(NC):
        k.tag = "A%d" % c
        for ks in range(4):
            for mt in range(2):
                bload(k, so, vr(A + c * 32 + (mt * 4 + ks) * 4, 4), 4, "v4", 24, XD + c * 163840 + ks * 2048 + mt * 16, base=37)
    wscale(k, so, 24, WM, "v3", 41)
    k.tag = "tw1"
    for i in range(4):
        bload(k, so, vr(TW1 + 4 * i, 4), 4, "v3", 28, TB.off["k2_tw1"] + 1024 * i, base=35)
    k.tag = "G3"
    for i in range(8):
        bload(k, so, ar(aG3 + 4 * i, 4), 4, "v3", 28, TB.off["k2_G3"] + 1024 * i)
    k.tag = "W"
    for c in range(NC):
        for h in range(2):
            bload(k, so, vr(W + c * 8 + h * 4, 4), 4, "v5", 24, WT + c * 163840 + h * 16, base=37)
    k.tag = "G1"
    for i in range(8):
        bload(k, so, ar(aG1 + 4 * i, 4), 4, "v3", 28, TB.off["k2_G1i"] + 1024 * i)
    k.tag = "tw2"
    for i in range(4):
        bload(k, so, vr(TW2 + 4 * i, 4), 4, "v3", 28, TB.off["k2_tw2"] + 1024 * i, base=35)
    k.stamp("issued")
    D = 132
    P = 164
    TMP = 180
    WS = 196
    f3i = 0
    for c in range(NC):
        k.wait("A%d" % c)
        for ks in range(4):
            for mt in range(2):
                for cp in range(2):
                    d = D + c * 16 + (mt * 2 + cp) * 4
                    k("v_mfma_f32_16x16x32_f16 %s, %s, %s, %s" % (vr(d, 4), vr(A + c * 32 + (mt * 4 + ks) * 4, 4),
                                                              ar(aF1 + (ks * 2 + cp) * 4, 4), "0" if ks == 0 else vr(d, 4)))
                if c == 0:
                    k.tag = "F3"
                    for _ in range(2):
                        bload(k, so, ar(aF3 + 4 * f3i, 4), 4, "v3", 28, TB.off["k2_F3i"] + 1024 * f3i, base=36)
                        f3i += 1
    k.stamp("step1")
    wscale_finish(k, WM, 41)
    k("s_lshl_b32 s42, s41, 7")
    k("s_lshl_b32 s43, s41, 23")
    k.wait("tw1")
    for c in range(NC):
        for mt in range(2):
            d = D + c * 16 + mt * 8
            items = [(P + c * 8 + mt * 4 + r, d + r, d + 4 + r, TW1 + (mt * 4 + r) * 2, TW1 + (mt * 4 + r) * 2 + 1) for r in range(4)]
            cmul_batch(k, items, [TMP + j for j in range(8)])
    k.wait("G3")
    for c in range(NC):
        for t in range(4):
            d = D + c * 16 + t * 4
            for mt in range(2):
                k("v_mfma_f32_16x16x32_f16 %s, %s, %s, %s" % (vr(d, 4), ar(aG3 + (t * 2 + mt) * 4, 4), vr(P + c * 8 + mt * 4, 4),
                                                          "0" if mt == 0 else vr(d, 4)))
    k.stamp("step3")
    k.wait("W")
    for c in range(NC):
        for e in range(8):
            k("v_dot2_f32_bf16 v%d, v%d, s42, 0" % (WS + 2 * e, W + c * 8 + e))
            k("v_dot2_f32_bf16 v%d, v%d, s43, 0" % (WS + 2 * e + 1, W + c * 8 + e))
        items = [(P + c * 8 + e, D + c * 16 + (e >> 1) * 4 + (e & 1) * 2, D + c * 16 + (e >> 1) * 4 + (e & 1) * 2 + 1,
                  WS + 2 * e, WS + 2 * e + 1) for e in range(8)]
        cmul_batch(k, items, [TMP + j for j in range(16)])
    k.wait("G1")
    for c in range(NC):
        for at in range(2):
            for cp in range(2):
                d = D + c * 16 + (at * 2 + cp) * 4
                for u in range(2):
                    k("v_mfma_f32_16x16x32_f16 %s, %s, %s, %s" % (vr(d, 4), vr(P + c * 8 + u * 4, 4),
                                                              ar(aG1 + ((u * 2 + at) * 2 + cp) * 4, 4), "0" if u == 0 else vr(d, 4)))
    k("s_lshl_b32 s38, s32, 11")
    k("v_add_u32 v7, s38, v3")
    k("s_and_b32 s38, s32, 1")
    k("s_lshl_b32 s38, s38, 10")
    k("v_add_u32 v8, s38, v3")
    k.stamp("inv1")
    k.wait("tw2")
    for c in range(NC):
        for at in range(2):
            d = D + c * 16 + at * 8
            items = [(P + c * 8 + at * 4 + r, d + r, d + 4 + r, TW2 + (at * 4 + r) * 2, TW2 + (at * 4 + r) * 2 + 1) for r in range(4)]
            cmul_batch(k, items, [TMP + j for j in range(8)])
            k("ds_write_b128 v7, %s offset:%d" % (vr(P + c * 8 + at * 4, 4), c * 8192 + at * 1024))
    k("s_waitcnt lgkmcnt(0)")
    k("s_barrier")
    k.stamp("barrier")
    Bf = A
    for c in range(NC):
        k.tag = "L%d" % c
        for kw in range(4):
            k("ds_read_b128 %s, v8 offset:%d" % (vr(Bf + c * 16 + kw * 4, 4), c * 8192 + kw * 2048))
    k.wait("F3")
    for c in range(NC):
        k.waitl("L%d" % c)
        for kw in range(4):
            for t in range(4):
                d = D + c * 16 + t * 4
                k("v_mfma_f32_16x16x32_f16 %s, %s, %s, %s" % (vr(d, 4), ar(aF3 + (t * 4 + kw) * 4, 4), vr(Bf + c * 16 + kw * 4, 4),
                                                          "0" if kw == 0 else vr(d, 4)))
    k.stamp("inv3")
    srd(k, 48, 10, YD, 256 * YBLK)
    for c in range(NC):
        for e in range(8):
            d = D + c * 16 + (e >> 1) * 4 + (e & 1) * 2
            k("v_cvt_pk_f16_f32 v%d, v%d, v%d" % (P + c * 8 + e, d, d + 1))
        for sl in range(2):
            k("s_cmp_eq_u32 s%d, 0x%x" % (53 + c * 2 + sl, NOSLOT))
            k.settle()
            k("s_cbranch_scc1 k2_sk%d%d" % (c, sl))
            for h in range(2):
                k("buffer_store_dwordx4 %s, v6, s[48:51], s%d offen offset:%d" % (vr(P + c * 8 + h * 4, 4), 53 + c * 2 + sl, 16 * h))
            k.label("k2_sk%d%d" % (c, sl))
    k.stamp_flush(1)
    k.label("k2_end")
    k("s_endpgm")
    gen_prep(k)
    return k, (256, 256, 16384)
```

```python
from common import *
from k2 import wscale, wscale_finish

LP = 1552


def gen_k3():
    k = Kern("k3_kernel")
    so = SOff(k, 40)
    k("s_cmp_ge_u32 s2, 256")
    k("s_cbranch_scc1 k3_end")
    k.stamp("start")
    k("s_load_dwordx2 s[4:5], s[0:1], 0")
    k("s_load_dwordx2 s[10:11], s[0:1], 80")
    table_srd(k, 28, "k3")
    k("s_and_b32 s3, s2, 15")
    k("s_lshl_b32 s3, s3, 4")
    k("s_lshr_b32 s33, s2, 4")
    k("s_or_b32 s3, s3, s33")
    k("v_and_b32 v1, 63, v0")
    k("v_lshrrev_b32 v2, 6, v0")
    k("v_lshlrev_b32 v3, 4, v1")
    k("v_readfirstlane_b32 s32, v2")
    H1, TW, H3 = 20, 52, 68
    k.tag = "tb"
    for i in range(8):
        bload(k, so, vr(H1 + 4 * i, 4), 4, "v3", 28, TB.off["k3_H1"] + 1024 * i)
    for i in range(4):
        bload(k, so, vr(TW + 4 * i, 4), 4, "v3", 28, TB.off["k3_tw"] + 1024 * i)
    for i in range(2):
        bload(k, so, vr(H3 + 4 * i, 4), 4, "v3", 28, TB.off["k3_H3"] + 1024 * i)
    k("s_and_b32 s33, s3, 15")
    k("s_bfe_u32 s34, s3, 0x20004")
    k("s_lshl_b32 s34, s34, 6")
    k("s_add_u32 s33, s33, s34")
    k("s_bfe_u32 s34, s3, 0x10006")
    k("s_lshl_b32 s34, s34, 4")
    k("s_add_u32 s33, s33, s34")
    k("s_lshr_b32 s34, s3, 7")
    k("s_lshl_b32 s34, s34, 10")
    k("s_add_u32 s33, s33, s34")
    k("s_lshl_b32 s34, s32, 8")
    k("s_add_u32 s33, s33, s34")
    k("s_lshr_b32 s44, s33, 5")
    k("s_lshl_b32 s44, s44, 1")
    k("s_bfe_u32 s45, s33, 0x10002")
    k("s_add_u32 s44, s44, s45")
    k("s_mul_i32 s44, s44, 20480")
    k("s_bfe_u32 s45, s33, 0x20003")
    k("s_lshl_b32 s45, s45, 6")
    k("s_add_u32 s44, s44, s45")
    k("s_and_b32 s45, s33, 3")
    k("s_lshl_b32 s45, s45, 4")
    k("s_add_u32 s44, s44, s45")
    k("s_add_u32 s44, s44, 0x%x" % HN)
    k("s_add_u32 s45, s44, 40960")
    k("s_lshl_b32 s46, s2, 10")
    k("s_add_u32 s46, s46, 0x%x" % STATS)
    k("s_mul_i32 s33, s33, 1280")
    k("s_add_u32 s34, s33, %d" % (32 * 1280))
    k("s_mul_i32 s35, s3, %d" % YBLK)
    k("v_lshrrev_b32 v4, 4, v1")
    k("v_mul_u32_u24 v2, 320, v4")
    k("v_and_b32 v5, 15, v1")
    k("v_lshl_add_u32 v2, v5, 2, v2")
    k("v_lshlrev_b32 v6, 4, v0")
    k("v_and_b32 v7, 1, v0")
    k("v_mul_u32_u24 v7, %d, v7" % (4 * LP))
    k("v_lshrrev_b32 v8, 1, v0")
    k("v_lshl_add_u32 v7, v8, 2, v7")
    k("v_min_u32 v8, 10, v5")
    k("v_mad_u32_u24 v8, v4, 12, v8")
    k("v_lshlrev_b32 v8, 4, v8")
    k("s_mul_i32 s36, s32, %d" % (2 * LP))
    k("v_add_u32 v8, s36, v8")
    k.stamp("pre-karg")
    k("s_waitcnt lgkmcnt(0)")
    k.stamp("karg")
    srd(k, 12, 4, 0, 2048 * 1280)
    srd(k, 24, 10, 0, WS_END)
    Y = 76
    k.tag = "y"
    for rnd in range(3):
        bload(k, so, vr(Y + 4 * rnd, 4), 4, "v6", 24, YD + 4096 * rnd, base=35)
    WM = 88
    wscale(k, so, 24, WM, "v3", 41)
    k("v_mov_b32 v9, -1")
    k("v_lshlrev_b32 v220, 2, v0")
    k("buffer_store_dword v9, v220, s[24:27], s46 offen")
    X = 10
    k.tag = "x"
    for pp in range(2):
        for i in range(5):
            k("buffer_load_dword v%d, v2, s[12:15], s%d offen offset:%d" % (X + 5 * pp + i, 33 + pp, 64 * i))
    k.stamp("issued")
    k.wait("y")
    k.stamp("y arrived")
    for rnd in range(3):
        for e in range(4):
            k("ds_write_b32 v7, v%d offset:%d" % (Y + 4 * rnd + e, e * LP + rnd * 512))
    k("s_waitcnt lgkmcnt(0)")
    k("s_barrier")
    k.stamp("barrier")
    A = 92
    for pp in range(2):
        k.tag = "a%d" % pp
        for u in range(2):
            k("ds_read_b128 %s, v8 offset:%d" % (vr(A + (pp * 2 + u) * 4, 4), pp * LP + u * 768))
    wscale_finish(k, WM, 41)
    k("s_sub_i32 s41, 254, s41")
    k("s_lshl_b32 s41, s41, 23")
    D = 108
    P = 140
    TMP = 156
    E = 172
    for pp in range(2):
        k.waitl("a%d" % pp)
        for u in range(2):
            for at in range(2):
                for cp in range(2):
                    d = D + ((pp * 2 + at) * 2 + cp) * 4
                    k("v_mfma_f32_16x16x32_f16 %s, %s, %s, %s" % (vr(d, 4), vr(A + (pp * 2 + u) * 4, 4),
                                                              vr(H1 + ((u * 2 + at) * 2 + cp) * 4, 4), "0" if u == 0 else vr(d, 4)))
    for pp in range(2):
        for at in range(2):
            d = D + (pp * 2 + at) * 8
            items = [(P + (pp * 2 + at) * 4 + r, d + r, d + 4 + r, TW + (at * 4 + r) * 2, TW + (at * 4 + r) * 2 + 1) for r in range(4)]
            cmul_batch(k, items, [TMP + j for j in range(8)])
    for pp in range(2):
        for at in range(2):
            for bt in range(2):
                e = E + ((pp * 2 + at) * 2 + bt) * 4
                k("v_mfma_f32_16x16x32_f16 %s, %s, %s, 0" % (vr(e, 4), vr(H3 + bt * 4, 4), vr(P + (pp * 2 + at) * 4, 4)))
    k.stamp("fft")
    k.wait("x")
    XF = 108
    HP = 204
    for pp in range(2):
        for i in range(5):
            ys = []
            for at in range(2):
                e = E + (pp * 2 + at) * 8
                ys.append(e + i if i < 4 else e + 4)
            a, b = XF + 10 * pp + 2 * i, XF + 10 * pp + 2 * i + 1
            t = TMP
            k("v_mul_f32 v%d, s41, v%d" % (a, ys[0]))
            k("v_mul_f32 v%d, s41, v%d" % (b, ys[1]))
            k("v_cvt_pk_bf16_f32 v%d, v%d, v%d" % (t, a, b))
            k("v_lshlrev_b32 v%d, 16, v%d" % (a, t))
            k("v_and_b32 v%d, 0xffff0000, v%d" % (b, t))
            k("v_lshlrev_b32 v%d, 16, v%d" % (t + 1, X + 5 * pp + i))
            k("v_and_b32 v%d, 0xffff0000, v%d" % (t + 2, X + 5 * pp + i))
            k("v_add_f32 v%d, v%d, v%d" % (a, a, t + 1))
            k("v_add_f32 v%d, v%d, v%d" % (b, b, t + 2))
            h = HP + 5 * pp + i
            k("v_cvt_pk_bf16_f32 v%d, v%d, v%d" % (h, a, b))
            k("v_lshlrev_b32 v%d, 16, v%d" % (a, h))
            k("v_and_b32 v%d, 0xffff0000, v%d" % (b, h))
            bstore(k, so, "v%d" % h, 1, "v2", 24, HB + 64 * i, base=33 + pp)
    k.stamp("h")
    rows = [dict(x=[XF + 10 * pp + j for j in range(10)], tmp=[TMP + 4 * pp + j for j in range(4)]) for pp in range(2)]
    layernorm_rows(k, rows, 640, 42)
    k("v_lshlrev_b32 v6, 8, v1")
    k("v_lshrrev_b32 v7, 2, v1")
    k("v_lshlrev_b32 v7, 8, v7")
    k("v_and_b32 v8, 3, v1")
    k("v_lshl_add_u32 v7, v8, 2, v7")
    k("v_add_u32 v7, 16384, v7")
    for pp in range(2):
        for i in range(5):
            k("v_cvt_pk_bf16_f32 v%d, v%d, v%d" % (E + 8 * pp + i, XF + 10 * pp + 2 * i, XF + 10 * pp + 2 * i + 1))
        k("buffer_store_dwordx4 %s, v6, s[24:27], s%d offen" % (vr(E + 8 * pp, 4), 44 + pp))
        k("buffer_store_dword v%d, v7, s[24:27], s%d offen" % (E + 8 * pp + 4, 44 + pp))
    k.stamp_flush(2)
    k.label("k3_end")
    k("s_endpgm")
    return k, (256, 256, 8 * LP)
```

```python
from common import *

BIG = 0x7f000000
C0 = -2.0 * np.sqrt(2.0 / np.pi) * np.log2(np.e)
C1 = C0 * 0.044715
IMB = 81920


def gelu_consts(k, base):
    for i, v in enumerate((C0, C0, C1, C1, 1.0, 1.0)):
        k("v_mov_b32 v%d, %s" % (base + i, f32hex(v)))


def gelu_pairs(k, pairs, tmps, cb):
    def P(r):
        return vr(r, 2)
    n = len(pairs)
    for i, (a, d) in enumerate(pairs):
        k("v_cvt_pk_bf16_f32 v%d, v%d, v%d" % (tmps[2 * i], a, a + 1))
    for i, (a, d) in enumerate(pairs):
        k("v_lshlrev_b32 v%d, 16, v%d" % (a, tmps[2 * i]))
        k("v_and_b32 v%d, 0xffff0000, v%d" % (a + 1, tmps[2 * i]))
    for i, (a, d) in enumerate(pairs):
        k("v_pk_mul_f32 %s, %s, %s" % (P(tmps[2 * i]), P(a), P(a)))
    for i, (a, d) in enumerate(pairs):
        k("v_pk_fma_f32 %s, %s, %s, %s" % (P(tmps[2 * i]), P(tmps[2 * i]), P(cb + 2), P(cb)))
    for i, (a, d) in enumerate(pairs):
        k("v_pk_mul_f32 %s, %s, %s" % (P(tmps[2 * i]), P(tmps[2 * i]), P(a)))
    for i, (a, d) in enumerate(pairs):
        k("v_exp_f32 v%d, v%d" % (tmps[2 * i], tmps[2 * i]))
        k("v_exp_f32 v%d, v%d" % (tmps[2 * i + 1], tmps[2 * i + 1]))
    for i, (a, d) in enumerate(pairs):
        k("v_pk_add_f32 %s, %s, %s" % (P(tmps[2 * i]), P(tmps[2 * i]), P(cb + 4)))
    for i, (a, d) in enumerate(pairs):
        k("v_rcp_f32 v%d, v%d" % (tmps[2 * i], tmps[2 * i]))
        k("v_rcp_f32 v%d, v%d" % (tmps[2 * i + 1], tmps[2 * i + 1]))
    for i, (a, d) in enumerate(pairs):
        k("v_pk_mul_f32 %s, %s, %s" % (P(a), P(a), P(tmps[2 * i])))
    for i, (a, d) in enumerate(pairs):
        k("v_cvt_pk_bf16_f32 v%d, v%d, v%d" % (d, a, a + 1))


def rowperm(k, dst, c, tmp):
    k("v_lshrrev_b32 v%d, 2, v%d" % (tmp, c))
    k("v_and_b32 v%d, 3, v%d" % (dst, c))
    k("v_lshl_add_u32 v%d, v%d, 3, v%d" % (dst, tmp, dst))


def k0_of(ks):
    if ks < 16:
        return 160 * (ks >> 2) + 8 * (ks & 3), 1
    return 160 * (ks - 16) + 128, 2


def gen_k4():
    k = Kern("k4_kernel")
    so = SOff(k, 40)
    k("s_cmp_ge_u32 s2, 256")
    k("s_cbranch_scc1 k4_end")
    k.stamp("start")
    k("s_load_dwordx2 s[8:9], s[0:1], 32")
    k("s_load_dwordx2 s[10:11], s[0:1], 80")
    k("v_and_b32 v1, 63, v0")
    k("v_lshrrev_b32 v2, 6, v0")
    k("v_lshlrev_b32 v3, 4, v1")
    k("v_readfirstlane_b32 s32, v2")
    k("s_bfe_u32 s33, s2, 0x20001")
    k("s_lshl_b32 s33, s33, 2")
    k("s_lshr_b32 s34, s2, 6")
    k("s_add_u32 s33, s33, s34")
    k("s_and_b32 s34, s2, 1")
    k("s_lshl_b32 s34, s34, 3")
    k("s_bfe_u32 s35, s2, 0x30003")
    k("s_add_u32 s34, s34, s35")
    k("s_lshl_b32 s52, s33, 2")
    k("s_add_u32 s52, s52, s32")
    k("s_mul_i32 s35, s52, 40960")
    k("v_add_u32 v6, s35, v3")
    k("v_add_u32 v7, 20480, v6")
    k("s_lshl_b32 s35, s34, 2")
    k("s_mul_i32 s36, s34, 3")
    k("s_add_u32 s37, s36, 6")
    k("s_cmp_lt_u32 s34, 6")
    k("s_cselect_b32 s41, s35, s37")
    k("s_cselect_b32 s42, 4, 3")
    k("s_cselect_b32 s44, 1, 0")
    k("s_sub_u32 s37, s35, 10")
    k("s_cmp_lt_u32 s34, 10")
    k("s_cselect_b32 s43, s36, s37")
    k("s_sub_u32 s43, s43, s44")
    k("s_add_u32 s45, s41, 54")
    k("s_lshl_b32 s45, s45, 5")
    k("s_lshl_b32 s46, s43, 5")
    k("s_sub_u32 s47, s46, 96")
    k("s_sub_u32 s47, s47, s45")
    k("s_cmp_lt_u32 s34, 6")
    k("s_cselect_b32 s47, 0, s47")
    k("v_lshrrev_b32 v4, 3, v1")
    k("v_bfe_u32 v5, v1, 1, 2")
    k("v_lshrrev_b32 v8, 1, v4")
    k("v_xor_b32 v5, v5, v8")
    k("v_lshlrev_b32 v8, 5, v5")
    k("v_and_b32 v9, 1, v1")
    k("v_lshl_add_u32 v8, v9, 4, v8")
    k("v_add_u32 v8, s45, v8")
    k("v_mov_b32 v9, s47")
    k("v_cmp_eq_u32 vcc, 3, v5")
    k("v_cndmask_b32 v9, 0, v9, vcc")
    k("v_add_u32 v8, v8, v9")
    k("s_lshr_b32 s35, s32, 1")
    k("s_and_b32 s36, s32, 1")
    k("s_lshl_b32 s37, s35, 6")
    k("s_lshl_b32 s38, s36, 2")
    k("s_add_u32 s37, s37, s38")
    k("s_lshl_b32 s38, s35, 2")
    k("s_lshl_b32 s39, s36, 4")
    k("s_add_u32 s38, s38, s39")

    def rowpat(row8, d1, d2, t):
        k("v_lshrrev_b32 v%d, 2, v%d" % (t, row8))
        k("v_and_b32 v%d, 1, v%d" % (d1, row8))
        k("v_lshl_add_u32 v%d, v%d, 1, v%d" % (d1, t, d1))
        k("v_and_b32 v%d, 3, v%d" % (d2, row8))
        k("v_lshl_add_u32 v%d, v%d, 3, v%d" % (d2, t, d2))
        k("v_bfe_u32 v%d, v%d, 1, 1" % (t, row8))
        k("v_lshl_add_u32 v%d, v%d, 5, v%d" % (d1, t, d1))
        k("v_add_u32 v%d, s37, v%d" % (d1, d1))
        k("v_add_u32 v%d, s38, v%d" % (d2, d2))
        k("v_mul_u32_u24 v%d, 3456, v%d" % (d1, d1))
        k("v_mul_u32_u24 v%d, 3456, v%d" % (d2, d2))
    rowpat(4, 10, 11, 9)
    k("v_add_u32 v10, v10, v8")
    k("v_add_u32 v11, v11, v8")
    k("v_mul_u32_u24 v4, 43, v1")
    k("v_lshrrev_b32 v4, 8, v4")
    k("v_mul_u32_u24 v5, 6, v4")
    k("v_sub_u32 v5, v1, v5")
    k("v_lshlrev_b32 v8, 4, v5")
    k("s_add_u32 s46, s46, 32")
    k("v_add_u32 v8, s46, v8")
    k("v_and_b32 v4, 7, v4")
    rowpat(4, 12, 13, 9)
    k("v_add_u32 v12, v12, v8")
    k("v_add_u32 v13, v13, v8")
    k("s_lshl_b32 s48, s32, 10")
    k("s_mul_i32 s49, s32, 768")
    k("s_add_u32 s49, s49, %d" % IMB)
    k("v_lshrrev_b32 v4, 2, v1")
    k("v_and_b32 v5, 3, v1")
    k("v_lshlrev_b32 v5, 3, v5")
    k("v_lshl_add_u32 v8, v4, 7, v5")
    k("v_bfe_u32 v9, v1, 3, 2")
    k("v_lshlrev_b32 v9, 5, v9")
    TA = 16
    for us in range(4):
        k("v_xor_b32 v%d, %d, v9" % (TA + us, us * 32))
        k("v_add_u32 v%d, v%d, v8" % (TA + us, TA + us))
        k("v_add_u32 v%d, 0x10000, v%d" % (TA + 4 + us, TA + us))
    k("v_mul_u32_u24 v24, 96, v4")
    k("v_add_u32 v24, v24, v5")
    k("v_add_u32 v24, %d, v24" % IMB)
    k("s_waitcnt lgkmcnt(0)")
    srd(k, 12, 10, HN, 2048 * 1280)
    srd(k, 16, 8, 0, 640 * 3456)
    srd(k, 24, 10, 0, WS_END)

    def dmaA(ks):
        k0, ty = k0_of(ks)
        k("s_add_u32 m0, s48, %d" % (ks * 4096))
        k("s_mov_b32 s50, %d" % (k0 * 3456))
        k("buffer_load_dwordx4 v%d, s[16:19], s50 offen lds" % (10 if ty == 1 else 11))

    def dmaB(ks):
        k0, ty = k0_of(ks)
        k("s_add_u32 m0, s49, %d" % (ks * 3072))
        k("s_mov_b32 s50, %d" % (k0 * 3456))
        k("buffer_load_dwordx4 v%d, s[16:19], s50 offen lds" % (12 if ty == 1 else 13))

    for st in range(4):
        k.tag = "st%d" % st
        for ks in range(5 * st, 5 * st + 5):
            dmaA(ks)
            for e in range(2):
                bload(k, so, ar((e * 20 + ks) * 4, 4), 4, "v%d" % (6 + e), 12, ks * 1024)
    k.tag = "B"
    k("s_mov_b32 exec_hi, 0xffff")
    for ks in range(20):
        dmaB(ks)
    k("s_mov_b32 exec_hi, -1")
    k.stamp("issued")
    BB, D2, D1, ZP, CB, S, TMP = 32, 64, 96, 128, 144, 152, 168
    gelu_consts(k, CB)

    def mm_pass(img, slots, staged):
        n = len(slots)

        def rd(ks):
            for u in range(n):
                for ip in range(2):
                    dst = vr(BB + (ks & 1) * 16 + u * 4 + 2 * ip, 2)
                    if img == 0:
                        off = ks * 4096 + ip * 2048
                        k("ds_read_b64_tr_b16 %s, v%d offset:%d" % (dst, TA + u + 4 * (off >> 16), off & 0xffff))
                    else:
                        k("ds_read_b64_tr_b16 %s, v24 offset:%d" % (dst, ks * 3072 + ip * 1536 + u * 32))
        for ks in range(20):
            if ks % 5 == 0 and staged:
                k.wait("st%d" % (ks // 5))
                k("s_barrier")
                rd(ks)
            elif ks == 0:
                rd(ks)
            nxt = ks + 1 < 20 and not (staged and (ks + 1) % 5 == 0)
            if nxt:
                rd(ks + 1)
                k("s_waitcnt lgkmcnt(%d)" % (2 * n))
            else:
                k("s_waitcnt lgkmcnt(0)")
            for u, (D, tr) in enumerate(slots):
                for e in range(2):
                    d = D + e * 16
                    a = ar((e * 20 + ks) * 4, 4)
                    b = vr(BB + (ks & 1) * 16 + u * 4, 4)
                    if tr:
                        a, b = b, a
                    k("v_mfma_f32_16x16x32_bf16 %s, %s, %s, %s" % (vr(d, 4), a, b, "0" if ks == 0 else vr(d, 4)))

    vm_save = list(k.vm)
    for n in (4, 3):
        k.vm = list(vm_save)
        if n == 4:
            k("s_cmp_eq_u32 s42, 3")
            k.settle()
            k("s_cbranch_scc1 k4_z2n3")
        else:
            k.label("k4_z2n3")
        mm_pass(0, [(D2 + 4 * u, False) for u in range(3)] + [(D2 + 12, False) if n == 4 else (D1, True)], True)
        for i in range(16):
            k("v_mov_b32 v%d, 0" % (S + i))
        for u in range(n):
            pairs = [(D2 + e * 16 + u * 4 + 2 * hh, ZP + u * 4 + e * 2 + hh) for e in range(2) for hh in range(2)]
            gelu_pairs(k, pairs, [TMP + i for i in range(8)], CB)
            for (a, d) in pairs:
                k("v_lshlrev_b32 v%d, 16, v%d" % (a, d))
                k("v_and_b32 v%d, 0xffff0000, v%d" % (a + 1, d))
            for e in range(2):
                for hh in range(2):
                    a = D2 + e * 16 + u * 4 + 2 * hh
                    s_, q_ = S + e * 4 + 2 * hh, S + 8 + e * 4 + 2 * hh
                    k("v_pk_add_f32 %s, %s, %s" % (vr(s_, 2), vr(s_, 2), vr(a, 2)))
                    k("v_pk_fma_f32 %s, %s, %s, %s" % (vr(q_, 2), vr(a, 2), vr(a, 2), vr(q_, 2)))
        if n == 4:
            k.settle()
            k("s_branch k4_z2done")
    k.label("k4_z2done")
    k.stamp("z2+gelu")
    so.cur = None
    def val(m, i):
        b = {0: 0, 1: 2, 2: 1, 3: 3}[i]
        return S + m * 4 + b
    Zr = TMP
    for m in range(4):
        for h2 in range(2):
            a, b = val(m, 2 * h2), val(m, 2 * h2 + 1)
            k("v_add_f32 v%d, v%d, v%d row_mirror bank_mask:0x3" % (Zr + 2 * m + h2, a, a))
    for m in range(4):
        for h2 in range(2):
            a, b = val(m, 2 * h2), val(m, 2 * h2 + 1)
            k("v_add_f32 v%d, v%d, v%d row_mirror bank_mask:0xc" % (Zr + 2 * m + h2, b, b))
    Yr = TMP + 8
    for m in range(4):
        k("v_add_f32 v%d, v%d, v%d row_half_mirror bank_mask:0x5" % (Yr + m, Zr + 2 * m, Zr + 2 * m))
    for m in range(4):
        k("v_add_f32 v%d, v%d, v%d row_half_mirror bank_mask:0xa" % (Yr + m, Zr + 2 * m + 1, Zr + 2 * m + 1))
    for qp in ("[1,0,3,2]", "[2,3,0,1]"):
        for m in range(4):
            k("v_add_f32 v%d, v%d, v%d quad_perm:%s" % (Yr + m, Yr + m, Yr + m, qp))
    k("s_lshl_b32 s47, s33, 4")
    k("s_add_u32 s48, s47, s34")
    k("s_lshl_b32 s48, s48, 10")
    k("s_lshl_b32 s49, s32, 8")
    k("s_add_u32 s48, s48, s49")
    k("v_lshrrev_b32 v10, 2, v1")
    k("v_lshlrev_b32 v10, 4, v10")
    k.tag = "pub"
    bstore(k, so, vr(Yr, 4), 4, "v10", 24, STATS, base=48, mods=" sc1")
    k.wait("B")
    k("s_barrier")
    k.stamp("published")
    k("s_mul_i32 s53, s52, %d" % (2 * 54 * 512))
    k("s_lshl_b32 s54, s43, 9")
    k("s_add_u32 s53, s53, s54")
    k("s_add_u32 s53, s53, 0x%x" % Z1)
    k("s_add_u32 s54, s53, %d" % (54 * 512))
    k("v_lshlrev_b32 v13, 3, v1")
    mm_pass(1, [(D1 + 4 + 4 * u, True) for u in range(3)], False)
    k("s_lshl_b32 s48, s33, 14")
    k("s_add_u32 s48, s48, s49")
    k("s_add_u32 s48, s48, 0x%x" % STATS)
    k("v_and_b32 v12, 3, v1")
    k("v_lshl_add_u32 v10, v12, 12, v10")
    L = BB
    for b in (1, 2, 3, 0):
        if b == 3:
            k("s_cmp_lt_u32 s34, 6")
            k("s_cselect_b32 s55, 1, 0")
            k("s_cmp_ge_u32 s34, 10")
            k("s_cselect_b32 s55, 1, s55")
            k("s_cmp_eq_u32 s55, 0")
            k.settle()
            k("s_cbranch_scc1 k4_z1sk3")
        if b == 0:
            k.label("k4_z1sk3")
            for i in range(4):
                k("buffer_load_dwordx4 %s, v10, s[24:27], s48 offen offset:%d sc1" % (vr(L + 4 * i, 4), 1024 * i))
            k("s_cmp_lt_u32 s34, 6")
            k.settle()
            k("s_cbranch_scc1 k4_z1done")
        pairs = [(D1 + e * 16 + b * 4 + 2 * hh, TMP + 8 + e * 2 + hh) for e in range(2) for hh in range(2)]
        gelu_pairs(k, pairs, [TMP + i for i in range(8)], CB)
        for e in range(2):
            k("buffer_store_dwordx2 %s, v13, s[24:27], s%d offen offset:%d" % (vr(TMP + 8 + e * 2, 2), 53 + e, b * 512))
    k.label("k4_z1done")
    k.stamp("z1+gelu")
    so.cur = None
    k("s_mov_b32 s55, 0")
    k.label("k4_poll")
    k("s_waitcnt vmcnt(0)")
    k("v_max3_u32 v12, v%d, v%d, v%d" % (L, L + 1, L + 2))
    for i in range(3, 15, 2):
        k("v_max3_u32 v12, v12, v%d, v%d" % (L + i, L + i + 1))
    k("v_max_u32 v12, v12, v%d" % (L + 15))
    k("v_cmp_eq_u32 vcc, -1, v12")
    k("s_cmp_eq_u64 vcc, 0")
    k("s_cbranch_scc1 k4_ready")
    k("s_add_u32 s55, s55, 1")
    k("s_cmp_gt_u32 s55, 0x20000")
    k("s_cbranch_scc1 k4_ready")
    for i in range(4):
        k("buffer_load_dwordx4 %s, v10, s[24:27], s48 offen offset:%d sc1" % (vr(L + 4 * i, 4), 1024 * i))
    k("s_branch k4_poll")
    k.label("k4_ready")
    k.stamp("polled")
    for i in (1, 2, 3):
        for h2 in range(2):
            k("v_pk_add_f32 %s, %s, %s" % (vr(L + 2 * h2, 2), vr(L + 2 * h2, 2), vr(L + 4 * i + 2 * h2, 2)))
    for qp in ("[1,0,3,2]", "[2,3,0,1]"):
        for m in range(4):
            k("v_add_f32 v%d, v%d, v%d quad_perm:%s" % (L + m, L + m, L + m, qp))
    inv = f32hex(1.0 / 864)
    for e in range(2):
        k("v_mul_f32 v%d, %s, v%d" % (L + e, inv, L + e))
        k("v_mul_f32 v%d, %s, v%d" % (L + 2 + e, inv, L + 2 + e))
        k("v_fma_f32 v%d, -v%d, v%d, v%d" % (L + 2 + e, L + e, L + e, L + 2 + e))
        k("v_max_f32 v%d, 0, v%d" % (L + 2 + e, L + 2 + e))
    stats_to_scale(k, [(L + e, L + 2 + e, L + 4 + e) for e in range(2)])
    k("s_lshl_b32 s53, s41, 16")
    k("s_lshl_b32 s54, s52, 10")
    k("s_add_u32 s53, s53, s54")
    for u in range(4):
        if u == 3:
            k("s_cmp_eq_u32 s42, 3")
            k.settle()
            k("s_cbranch_scc1 k4_fin")
        for e in range(2):
            for r in range(4):
                a = D2 + e * 16 + u * 4 + r
                k("v_subrev_f32 v%d, v%d, v%d row_newbcast:%d" % (a, L + e, a, 4 * r))
        for e in range(2):
            for hh in range(2):
                a = D2 + e * 16 + u * 4 + 2 * hh
                t = L + 8 + e * 2 + hh
                k("v_cvt_pk_bf16_f32 v%d, v%d, v%d" % (t, a, a + 1))
                k("v_lshlrev_b32 v%d, 16, v%d" % (a, t))
                k("v_and_b32 v%d, 0xffff0000, v%d" % (a + 1, t))
        for e in range(2):
            for r in range(4):
                a = D2 + e * 16 + u * 4 + r
                k("v_mul_f32 v%d, v%d, v%d row_newbcast:%d" % (a, L + 2 + e, a, 4 * r))
        for e in range(2):
            for hh in range(2):
                a = D2 + e * 16 + u * 4 + 2 * hh
                k("v_cvt_pk_bf16_f32 v%d, v%d, v%d" % (ZP + u * 4 + e * 2 + hh, a, a + 1))
        bstore(k, so, vr(ZP + u * 4, 4), 4, "v3", 24, Z2N + u * 65536, base=53)
    k.label("k4_fin")
    k.stamp_flush(3)
    k.label("k4_end")
    k("s_endpgm")
    return k, (256, 256, IMB + 640 * 96)


def gen_all():
    out = [gen_k4()]
    try:
        import k5
        out += k5.gen_all()
    except ImportError:
        pass
    return out
```

```python
from common import *
from k4 import rowperm, BIG


def wgmap(k):
    k("s_bfe_u32 s33, s2, 0x20001")
    k("s_lshl_b32 s33, s33, 3")
    k("s_lshr_b32 s34, s2, 5")
    k("s_add_u32 s33, s33, s34")
    k("s_and_b32 s34, s2, 1")
    k("s_lshl_b32 s34, s34, 2")
    k("s_bfe_u32 s35, s2, 0x20003")
    k("s_add_u32 s34, s34, s35")


def lanes(k):
    k("v_and_b32 v1, 63, v0")
    k("v_lshrrev_b32 v2, 6, v0")
    k("v_lshlrev_b32 v3, 4, v1")
    k("v_readfirstlane_b32 s32, v2")
    k("v_lshrrev_b32 v4, 4, v1")
    k("v_and_b32 v5, 15, v1")


def lds_reduce(k, name, nacc, accreg, RD):
    for w in range(4):
        if w < 3:
            k("s_cmp_lg_u32 s32, %d" % w)
            k.settle()
            k("s_cbranch_scc1 %s_w%d" % (name, w + 1))
        for mt in range(4):
            if mt == w:
                continue
            sl = w if w < mt else w - 1
            for i in range(nacc):
                off = ((mt * 3 + sl) * nacc + i) * 1024
                k("ds_write_b128 v%d, %s offset:%d" % ((3, 14)[off >> 16], vr(accreg(mt, i), 4), off & 0xffff))
        for i in range(nacc):
            for q in range(4):
                k("v_mov_b32 v%d, v%d" % (RD + 4 * i + q, accreg(w, i) + q))
        if w < 3:
            k.settle()
            k("s_branch %s_wd" % name)
            k.label("%s_w%d" % (name, w + 1))
    k.label("%s_wd" % name)
    k("s_mul_i32 s36, s32, %d" % (3 * nacc * 1024))
    k("v_add_u32 v15, s36, v3")
    k("s_waitcnt lgkmcnt(0)")
    k("s_barrier")


def gen_k5():
    k = Kern("k5_kernel")
    so = SOff(k, 40)
    k("s_cmp_ge_u32 s2, 256")
    k("s_cbranch_scc1 k5_end")
    k.stamp("start")
    k("s_load_dwordx4 s[4:7], s[0:1], 40")
    k("s_load_dwordx2 s[10:11], s[0:1], 80")
    lanes(k)
    wgmap(k)
    k("s_mul_i32 s35, s34, 7")
    k("s_mul_i32 s36, s34, 6")
    k("s_add_u32 s36, s36, 6")
    k("s_cmp_lt_u32 s34, 6")
    k("s_cselect_b32 s41, s35, s36")
    k("s_cselect_b32 s42, 0, 0x%x" % BIG)
    rowperm(k, 6, 5, 7)
    k("s_lshl_b32 s35, s33, 6")
    k("v_add_u32 v10, s35, v6")
    k("v_lshlrev_b32 v6, 12, v10")
    k("v_lshl_add_u32 v6, v4, 4, v6")
    k("s_lshl_b32 s35, s32, 10")
    k("v_add_u32 v6, s35, v6")
    k("v_add_u32 v7, %d, v6" % (4 * 4096))
    k("v_add_u32 v8, %d, v6" % (32 * 4096))
    k("v_add_u32 v9, %d, v6" % (36 * 4096))
    k("s_lshl_b32 s35, s41, 16")
    k("s_lshl_b32 s36, s32, 14")
    k("s_add_u32 s35, s35, s36")
    k("v_add_u32 v11, s35, v3")
    k("v_add_u32 v12, s42, v11")
    k("v_add_u32 v14, 0x10000, v3")
    for u in range(7):
        k("s_mov_b32 s%d, %d" % (60 + u, u * 65536))
    k("s_waitcnt lgkmcnt(0)")
    srd(k, 12, 4, 0, 2048 * 4096)
    srd(k, 16, 10, Z2N, 54 * 65536)
    srd(k, 20, 6, 0, 4096)
    srd(k, 24, 10, 0, WS_END)
    NST = 5
    ACC = 16
    def issue(ks):
        st = ks % NST
        k.tag = "ks%d" % ks
        if ks % 4 == 0 and ks > 0:
            for u in range(7):
                k("s_add_u32 s%d, s%d, 4096" % (60 + u, 60 + u))
        for mt in range(4):
            k("buffer_load_dwordx4 %s, v%d, s[12:15], 0 offen offset:%d" % (ar(st * 44 + 28 + mt * 4, 4), 6 + mt, 64 * ks))
        for u in range(7):
            k("buffer_load_dwordx4 %s, v%d, s[16:19], s%d offen offset:%d" % (ar(st * 44 + u * 4, 4), 12 if u == 6 else 11, 60 + u, (ks % 4) * 1024))
    for ks in range(NST):
        issue(ks)
    k.stamp("issued")
    for ks in range(16):
        st = ks % NST
        k.wait("ks%d" % ks)
        if ks in (0, 1, 4, 8, 12):
            k.stamp("ks%d arr" % ks)
        for u in range(7):
            for mt in range(4):
                d = ACC + (mt * 7 + u) * 4
                k("v_mfma_f32_16x16x32_bf16 %s, %s, %s, %s" % (vr(d, 4), ar(st * 44 + u * 4, 4), ar(st * 44 + 28 + mt * 4, 4),
                                                           "0" if ks == 0 else vr(d, 4)))
        if ks + NST < 16:
            issue(ks + NST)
    k.stamp("mainloop")
    k("s_lshl_b32 s43, s33, 2")
    k("s_add_u32 s43, s43, s32")
    k("s_mul_i32 s44, s43, %d" % (54 * 512))
    k("s_lshl_b32 s45, s41, 9")
    k("s_add_u32 s44, s44, s45")
    k("v_lshlrev_b32 v13, 3, v1")
    ZR = 128
    k.tag = "z1"
    for u in range(7):
        bload(k, so, vr(ZR + 2 * u, 2), 2, "v13", 24, Z1 + u * 512, base=44)
    k("s_lshr_b32 s45, s32, 1")
    k("s_lshl_b32 s45, s45, 5")
    k("s_and_b32 s46, s32, 1")
    k("s_lshl_b32 s46, s46, 2")
    k("s_add_u32 s45, s45, s46")
    k("v_add_u32 v10, s45, v10")
    k("v_lshlrev_b32 v10, 1, v10")
    k("buffer_load_ushort v2, v10, s[20:23], 0 offen")
    RD = 144
    lds_reduce(k, "k5r", 7, lambda mt, i: ACC + (mt * 7 + i) * 4, RD)
    k.stamp("lds wr+bar")
    T = 16
    for sl in range(3):
        for i in range(7):
            k("ds_read_b128 %s, v15 offset:%d" % (vr(T + (sl * 7 + i) * 4, 4), (sl * 7 + i) * 1024))
    for sl in range(3):
        k("s_waitcnt lgkmcnt(%d)" % min(15, 14 - 7 * sl))
        for i in range(7):
            for h2 in range(2):
                k("v_pk_add_f32 %s, %s, %s" % (vr(RD + 4 * i + 2 * h2, 2), vr(RD + 4 * i + 2 * h2, 2), vr(T + (sl * 7 + i) * 4 + 2 * h2, 2)))
    k("s_waitcnt vmcnt(0)")
    k("v_lshlrev_b32 v2, 16, v2")
    k("s_mul_i32 s44, s43, %d" % (27 * 1024))
    k("v_add_u32 v12, s42, v3")
    for u in range(7):
        r = RD + 4 * u
        t = T + 8 * u
        for h2 in range(2):
            a = r + 2 * h2
            k("v_cvt_pk_bf16_f32 v%d, v%d, v%d" % (t, a, a + 1))
            k("v_lshlrev_b32 v%d, 16, v%d" % (a, t))
            k("v_and_b32 v%d, 0xffff0000, v%d" % (a + 1, t))
            k("v_add_f32 v%d, v%d, v2" % (a, a))
            k("v_add_f32 v%d, v%d, v2" % (a + 1, a + 1))
            k("v_cvt_pk_bf16_f32 v%d, v%d, v%d" % (t, a, a + 1))
            k("v_lshlrev_b32 v%d, 16, v%d" % (a, t))
            k("v_and_b32 v%d, 0xffff0000, v%d" % (a + 1, t))
            k("v_lshlrev_b32 v%d, 16, v%d" % (t + 1, ZR + 2 * u + h2))
            k("v_and_b32 v%d, 0xffff0000, v%d" % (t + 2, ZR + 2 * u + h2))
            k("v_mul_f32 v%d, v%d, v%d" % (a, a, t + 1))
            k("v_mul_f32 v%d, v%d, v%d" % (a + 1, a + 1, t + 2))
            k("v_cvt_pk_bf16_f32 v%d, v%d, v%d" % (t + 4 + h2, a, a + 1))
        k("s_add_u32 s45, s41, %d" % u)
        k("s_lshr_b32 s46, s45, 1")
        k("s_lshl_b32 s46, s46, 10")
        k("s_and_b32 s45, s45, 1")
        k("s_lshl_b32 s45, s45, 3")
        k("s_add_u32 s45, s45, s46")
        k("s_add_u32 s45, s45, s44")
        k("s_add_u32 s45, s45, 0x%x" % UF)
        k("buffer_store_dwordx2 %s, v%d, s[24:27], s45 offen" % (vr(t + 4, 2), 12 if u == 6 else 3))
    k.stamp_flush(4)
    k.label("k5_end")
    k("s_endpgm")
    return k, (256, 256, 84 * 1024)


def gen_k6():
    k = Kern("k6_kernel")
    so = SOff(k, 40)
    k("s_cmp_ge_u32 s2, 256")
    k("s_cbranch_scc1 k6_end")
    k.stamp("start")
    k("s_load_dwordx2 s[4:5], s[0:1], 64")
    k("s_load_dwordx2 s[10:11], s[0:1], 80")
    lanes(k)
    wgmap(k)
    k("s_mul_i32 s35, s33, %d" % (4 * 27 * 1024))
    k("s_mul_i32 s36, s32, %d" % (7 * 1024))
    k("s_add_u32 s35, s35, s36")
    k("v_add_u32 v6, s35, v3")
    k("s_mul_i32 s35, s34, %d" % (5 * 27 * 1024))
    k("s_add_u32 s35, s35, s36")
    k("v_add_u32 v7, s35, v3")
    k("s_cmp_eq_u32 s32, 3")
    k("s_cselect_b32 s42, 0x%x, 0" % BIG)
    k("v_add_u32 v8, s42, v6")
    k("v_add_u32 v9, s42, v7")
    k("v_add_u32 v14, 0x10000, v3")
    k("s_waitcnt lgkmcnt(0)")
    srd(k, 12, 10, UF, 128 * 27 * 1024)
    srd(k, 16, 10, WOUTF, 40 * 27 * 1024)
    srd(k, 20, 4, 0, 2048 * 1280)
    srd(k, 24, 10, HB, 2048 * 1280)
    ACC = 16
    for i in range(7):
        k.tag = "ks%d" % i
        for mt in range(4):
            bload(k, so, ar(i * 36 + mt * 4, 4), 4, "v8" if i == 6 else "v6", 12, (mt * 27 + i) * 1024)
        for ud in range(5):
            bload(k, so, ar(i * 36 + 16 + ud * 4, 4), 4, "v9" if i == 6 else "v7", 16, (ud * 27 + i) * 1024)
    rowperm(k, 10, 5, 11)
    k("s_lshl_b32 s35, s33, 6")
    k("s_lshr_b32 s45, s32, 1")
    k("s_lshl_b32 s45, s45, 5")
    k("s_and_b32 s46, s32, 1")
    k("s_lshl_b32 s46, s46, 2")
    k("s_add_u32 s45, s45, s46")
    k("s_add_u32 s35, s35, s45")
    k("v_add_u32 v10, s35, v10")
    k("v_mul_u32_u24 v10, 1280, v10")
    k("v_mad_u32_u24 v10, v4, 40, v10")
    k("s_mul_i32 s43, s34, 160")
    k.stamp("issued")
    for i in range(7):
        k.wait("ks%d" % i)
        if i in (0, 3, 6):
            k.stamp("ks%d arr" % i)
        for ud in range(5):
            for mt in range(4):
                d = ACC + (mt * 5 + ud) * 4
                k("v_mfma_f32_16x16x32_bf16 %s, %s, %s, %s" % (vr(d, 4), ar(i * 36 + 16 + ud * 4, 4), ar(i * 36 + mt * 4, 4),
                                                           "0" if i == 0 else vr(d, 4)))
        if i == 0:
            HR = 96
            k.tag = "h"
            k("buffer_load_dwordx4 %s, v10, s[24:27], s43 offen" % vr(HR, 4))
            k("buffer_load_dwordx4 %s, v10, s[24:27], s43 offen offset:16" % vr(HR + 4, 4))
            k("buffer_load_dwordx2 %s, v10, s[24:27], s43 offen offset:32" % vr(HR + 8, 2))
    k.stamp("mainloop")
    RD = 108
    lds_reduce(k, "k6r", 5, lambda mt, i: ACC + (mt * 5 + i) * 4, RD)
    k.stamp("lds wr+bar")
    T = 16
    for sl in range(3):
        for i in range(5):
            k("ds_read_b128 %s, v15 offset:%d" % (vr(T + (sl * 5 + i) * 4, 4), (sl * 5 + i) * 1024))
    for sl in range(3):
        k("s_waitcnt lgkmcnt(%d)" % (10 - 5 * sl))
        for i in range(5):
            for h2 in range(2):
                k("v_pk_add_f32 %s, %s, %s" % (vr(RD + 4 * i + 2 * h2, 2), vr(RD + 4 * i + 2 * h2, 2), vr(T + (sl * 5 + i) * 4 + 2 * h2, 2)))
    k("s_waitcnt vmcnt(0)")
    O = 128
    for p in range(10):
        a = RD + 2 * p
        t = T + 4 * p
        k("v_cvt_pk_bf16_f32 v%d, v%d, v%d" % (t, a, a + 1))
        k("v_lshlrev_b32 v%d, 16, v%d" % (a, t))
        k("v_and_b32 v%d, 0xffff0000, v%d" % (a + 1, t))
        k("v_lshlrev_b32 v%d, 16, v%d" % (t + 1, HR + p))
        k("v_and_b32 v%d, 0xffff0000, v%d" % (t + 2, HR + p))
        k("v_add_f32 v%d, v%d, v%d" % (a, a, t + 1))
        k("v_add_f32 v%d, v%d, v%d" % (a + 1, a + 1, t + 2))
        k("v_cvt_pk_bf16_f32 v%d, v%d, v%d" % (O + p, a, a + 1))
    k("buffer_store_dwordx4 %s, v10, s[20:23], s43 offen" % vr(O, 4))
    k("buffer_store_dwordx4 %s, v10, s[20:23], s43 offen offset:16" % vr(O + 4, 4))
    k("buffer_store_dwordx2 %s, v10, s[20:23], s43 offen offset:32" % vr(O + 8, 2))
    k.stamp_flush(5)
    k.label("k6_end")
    k("s_endpgm")
    return k, (256, 256, 60 * 1024)


def gen_all():
    return [gen_k5(), gen_k6()]
```

```python
import re

REG_RE = re.compile(r"^(-?)(abs\()?([vas])(\d+|\[(\d+):(\d+)\])\)?$")

TRANS = ("v_exp_f32", "v_log_f32", "v_rcp_f32", "v_rsq_f32", "v_sqrt_f32", "v_sin_f32", "v_cos_f32")


def parse_reg(tok):
    tok = tok.strip()
    if tok in ("vcc",):
        return [("s", 106), ("s", 107)]
    if tok == "vcc_lo":
        return [("s", 106)]
    if tok == "exec":
        return [("s", 126), ("s", 127)]
    if tok == "m0":
        return [("s", 124)]
    m = REG_RE.match(tok)
    if not m:
        return []
    kind = m.group(3)
    if m.group(5) is not None:
        return [(kind, i) for i in range(int(m.group(5)), int(m.group(6)) + 1)]
    return [(kind, int(m.group(4)))]


def split_ops(s):
    out, depth, cur = [], 0, ""
    for ch in s:
        if ch in "[(":
            depth += 1
        if ch in "])":
            depth -= 1
        if ch == "," and depth == 0:
            out.append(cur.strip())
            cur = ""
        else:
            cur += ch
    if cur.strip():
        out.append(cur.strip())
    return out


def mfma_passes(mn):
    if "32x32x16" in mn or "32x32x8" in mn:
        return 8
    if "16x16x32" in mn or "16x16x16" in mn:
        return 4
    raise ValueError(mn)


class Kern:
    def __init__(self, name):
        self.name = name
        self.lines = []
        self.pos = 0
        self.reset_state()
        self.maxv = -1
        self.maxa = -1
        self.maxs = -1
        self.vm = []
        self.stamps = []
        self.tag = None
        self.lg = []

    def stamp(self, name=""):
        import os
        if not os.environ.get("STAMP"):
            return
        i = len(self.stamps)
        assert i < 13
        self.stamps.append(name)
        if i == 0:
            self.ins("s_memrealtime s[96:97]")
        self.ins("s_memtime s[%d:%d]" % (70 + 2 * i, 71 + 2 * i))

    def restamp(self):
        import os
        if not os.environ.get("STAMP"):
            return
        i = self.rs
        self.rs += 1
        self.ins("s_memtime s[%d:%d]" % (70 + 2 * i, 71 + 2 * i))

    def stamp_flush(self, kidx):
        import os
        if not os.environ.get("STAMP"):
            return
        self.stamp("end")
        self.ins("s_memrealtime s[98:99]")
        self.ins("s_load_dwordx2 s[100:101], s[0:1], 80")
        self.ins("s_waitcnt lgkmcnt(0) vmcnt(0)")
        self.ins("s_add_u32 s64, s100, 0x3000000")
        self.ins("s_addc_u32 s65, s101, 0")
        self.ins("s_mov_b32 s66, 0x1000000")
        self.ins("s_mov_b32 s67, 0x20000")
        self.ins("s_lshl_b32 s68, s2, 2")
        self.ins("s_add_u32 s68, s68, s32")
        self.ins("s_lshl_b32 s68, s68, 7")
        self.ins("s_add_u32 s68, s68, %d" % (kidx * 0x40000))
        self.ins("v_mov_b32 v1, s68")
        regs = [70 + 2 * i for i in range(len(self.stamps))]
        for i, r in enumerate(regs):
            self.ins("v_mov_b32 v0, s%d" % r)
            self.ins("buffer_store_dword v0, v1, s[64:67], 0 offen offset:%d" % (4 * i))
        for i, r in enumerate((96, 98)):
            self.ins("v_mov_b32 v0, s%d" % r)
            self.ins("buffer_store_dword v0, v1, s[64:67], 0 offen offset:%d" % (64 + 4 * i))
        open("stamps_%d.txt" % kidx, "w").write("\n".join(self.stamps))

    def wait(self, tag):
        idx = max(i for i, t in enumerate(self.vm) if t == tag)
        n = len(self.vm) - 1 - idx
        self.ins("s_waitcnt vmcnt(%d)" % min(n, 63))

    def waitl(self, tag):
        idx = max(i for i, t in enumerate(self.lg) if t == tag)
        n = len(self.lg) - 1 - idx
        self.ins("s_waitcnt lgkmcnt(%d)" % min(n, 15))

    def reset_state(self):
        self.valu_w = {}
        self.trans_w = {}
        self.opsel_w = {}
        self.mfma_w = {}
        self.mfma_c = {}
        self.valu_sw = {}
        self.salu_m0 = -100
        self.store_d = {}
        self.valu_exec = -100
        self.dot_w = {}

    def raw(self, s):
        self.lines.append(s)

    def comment(self, s):
        self.lines.append("    ; " + s)

    def label(self, l):
        self.settle()
        self.lines.append(l + ":")

    def settle(self):
        need = self.pos
        for r, (p, ps, _, _) in self.mfma_w.items():
            need = max(need, p + {4: 8, 8: 12}[ps] + 1)
        for r, (p, ps) in self.mfma_c.items():
            need = max(need, p + {4: 3, 8: 7}[ps] + 1)
        for d in (self.valu_w, self.trans_w, self.opsel_w, self.store_d):
            for r, p in d.items():
                need = max(need, p + 2 + 1)
        for r, p in self.dot_w.items():
            need = max(need, p + 3 + 1)
        for r, p in self.valu_sw.items():
            need = max(need, p + 5 + 1)
        need = max(need, self.salu_m0 + 2, self.valu_exec + 6)
        self._pad(need)
        self.reset_state()

    def _pad(self, need):
        while self.pos < need:
            n = min(need - self.pos, 16)
            self.lines.append("    s_nop %d" % (n - 1))
            self.pos += n

    def __call__(self, text):
        for t in text.strip().split("\n"):
            t = t.split(";")[0].strip()
            if t:
                self.ins(t)

    def ins(self, text):
        parts = text.split(None, 1)
        mn = parts[0]
        rest = parts[1] if len(parts) > 1 else ""
        ops = split_ops(rest)
        mods = ""
        if ops:
            last = ops[-1].split(None, 1)
            if len(last) > 1:
                ops[-1] = last[0]
                mods = last[1]
        regs = [parse_reg(o) for o in ops]
        for rl in regs:
            for k, i in rl:
                if k == "v":
                    self.maxv = max(self.maxv, i)
                elif k == "a":
                    self.maxa = max(self.maxa, i)
                elif k == "s" and i < 102:
                    self.maxs = max(self.maxs, i)
        is_mfma = mn.startswith("v_mfma")
        is_valu = mn.startswith("v_") and not is_mfma
        is_vmem = mn.startswith(("buffer_", "global_", "flat_"))
        is_ds = mn.startswith("ds_")
        is_salu = mn.startswith("s_")
        dpp = any(x in mods for x in ("row_", "quad_perm", "wave_"))
        writes, reads = [], []
        if is_mfma:
            writes = regs[0]
            reads = regs[1] + regs[2] + regs[3]
        elif is_valu:
            if mn.startswith("v_permlane") and "swap" in mn:
                writes = regs[0] + regs[1]
                reads = regs[0] + regs[1]
            elif mn.startswith(("v_add_co", "v_sub_co", "v_addc_co", "v_subb_co", "v_mad_u64")):
                writes = regs[0] + regs[1]
                reads = sum(regs[2:], [])
            else:
                writes = regs[0]
                reads = sum(regs[1:], [])
                if mn.startswith(("v_fmac", "v_fma_mixlo", "v_fma_mixhi", "v_dot2c", "v_writelane")) or dpp:
                    reads = reads + regs[0]
                if mn.startswith("v_cndmask") and len(ops) == 3:
                    reads = reads + parse_reg("vcc")
        elif is_vmem:
            if "load" in mn and " lds" not in (" " + mods) and "_lds_" not in mn:
                writes = regs[0]
                reads = sum(regs[1:], [])
            elif "atomic" in mn and ("sc0" in mods):
                writes = regs[0]
                reads = sum(regs, [])
            else:
                reads = sum(regs, [])
        elif is_ds:
            if mn.startswith(("ds_read", "ds_bpermute", "ds_permute", "ds_swizzle")):
                writes = regs[0]
                reads = sum(regs[1:], [])
            else:
                reads = sum(regs, [])
        elif is_salu:
            if mn.startswith(("s_cmp", "s_cbranch", "s_branch", "s_waitcnt", "s_barrier", "s_nop", "s_endpgm",
                              "s_sleep", "s_setprio", "s_bitcmp")):
                reads = sum(regs, [])
            else:
                writes = regs[0] if regs else []
                reads = sum(regs[1:], [])
        need = self.pos

        def req(p, n):
            nonlocal need
            need = max(need, p + n + 1)

        vreads = [r for r in reads if r[0] in "va"]
        vwrites = [r for r in writes if r[0] in "va"]
        sreads = [r for r in reads if r[0] == "s"]
        for r in vreads + vwrites:
            if r in self.dot_w:
                req(self.dot_w[r], 3)
        if is_mfma:
            ps = mfma_passes(mn)
            d = tuple(regs[0])
            for r in regs[1] + regs[2] + regs[3]:
                if r in self.valu_w:
                    req(self.valu_w[r], 2)
            for r in regs[1] + regs[2]:
                if r in self.mfma_w:
                    p, pps, _, _ = self.mfma_w[r]
                    req(p, {4: 8, 8: 12}[pps])
            for r in regs[3]:
                if r in self.mfma_w:
                    p, pps, dt, pmn = self.mfma_w[r]
                    if dt == tuple(regs[3]) and pps == ps:
                        pass
                    else:
                        req(p, {4: 6, 8: 10}[pps])
            for r in regs[0]:
                if r in self.mfma_w and r not in regs[3]:
                    p, pps, dt, pmn = self.mfma_w[r]
                    req(p, {4: 8, 8: 12}[pps])
            req(self.valu_exec, 4)
        else:
            for r in vreads + vwrites:
                if r in self.mfma_w:
                    p, pps, _, _ = self.mfma_w[r]
                    req(p, {4: 8, 8: 12}[pps])
            if is_valu:
                for r in vwrites:
                    if r in self.mfma_c:
                        p, pps = self.mfma_c[r]
                        req(p, {4: 3, 8: 7}[pps])
                    if r in self.store_d:
                        req(self.store_d[r], 2)
                for r in vreads:
                    if r in self.trans_w and mn not in TRANS:
                        req(self.trans_w[r], 1)
                    if r in self.opsel_w:
                        req(self.opsel_w[r], 1)
                    if dpp and r in self.valu_w:
                        req(self.valu_w[r], 2)
                    if mn.startswith("v_permlane") and r in self.valu_w:
                        req(self.valu_w[r], 2)
                    if mn.startswith(("v_readlane", "v_readfirstlane")) and r in self.valu_w:
                        req(self.valu_w[r], 1)
                for r in sreads:
                    if r in self.valu_sw:
                        req(self.valu_sw[r], 4 if mn.startswith(("v_readlane", "v_writelane")) else 2)
                if dpp:
                    req(self.valu_exec, 5)
            else:
                for r in vwrites:
                    if r in self.store_d:
                        req(self.store_d[r], 1)
            if is_vmem:
                for r in sreads:
                    if r in self.valu_sw:
                        req(self.valu_sw[r], 5)
                if " lds" in (" " + mods) or "_lds_" in mn:
                    req(self.salu_m0, 1)
        self._pad(need)
        p = self.pos
        if is_vmem:
            self.vm.append(self.tag)
        if is_ds:
            self.lg.append(self.tag)
        self.lines.append("    " + text)
        self.pos += 1
        if mn == "s_nop":
            self.pos += int(ops[0])
        for r in vwrites:
            for d in (self.valu_w, self.trans_w, self.opsel_w, self.mfma_w, self.dot_w):
                d.pop(r, None)
        if is_mfma:
            for r in regs[0]:
                self.mfma_w[r] = (p, mfma_passes(mn), tuple(regs[0]), mn)
            for r in regs[3]:
                self.mfma_c[r] = (p, mfma_passes(mn))
        elif is_valu:
            for r in vwrites:
                self.valu_w[r] = p
                if mn in TRANS:
                    self.trans_w[r] = p
                if mn.startswith("v_dot"):
                    self.dot_w[r] = p
                if mn.startswith(("v_fma_mixlo", "v_fma_mixhi")) or "dst_sel" in mods or "op_sel" in mods:
                    self.opsel_w[r] = p
            for r in writes:
                if r[0] == "s":
                    self.valu_sw[r] = p
                    if r[1] in (126, 127):
                        self.valu_exec = p
        elif is_salu:
            for r in writes:
                self.valu_sw.pop(r, None)
                if r == ("s", 124):
                    self.salu_m0 = p
        if is_vmem and "store" in mn and ("x4" in mn or "x3" in mn):
            data = regs[0] if mn.startswith("buffer_") else regs[1]
            for r in data:
                self.store_d[r] = p
        if mn.startswith(("s_cbranch", "s_branch")):
            pass

    def text(self, lds_note=""):
        nv = self.maxv + 1
        acc_off = max(4, (nv + 3) // 4 * 4)
        na = self.maxa + 1
        nfv = acc_off + na if na > 0 else nv
        body = [".globl %s" % self.name, ".p2align 8", ".type %s,@function" % self.name, self.name + ":"]
        body += self.lines
        desc = """.amdhsa_kernel %s
  .amdhsa_next_free_vgpr %d
  .amdhsa_next_free_sgpr %d
  .amdhsa_accum_offset %d
  .amdhsa_group_segment_fixed_size 0
  .amdhsa_kernarg_size 88
  .amdhsa_user_sgpr_count 2
  .amdhsa_user_sgpr_kernarg_segment_ptr 1
  .amdhsa_system_sgpr_workgroup_id_x 1
  .amdhsa_float_denorm_mode_32 3
  .amdhsa_float_denorm_mode_16_64 3
.end_amdhsa_kernel""" % (self.name, max(nfv, 8), max(self.maxs + 1, 16), acc_off)
        return "\n".join(body), desc


def vr(base, n=1):
    return "v%d" % base if n == 1 else "v[%d:%d]" % (base, base + n - 1)


def ar(base, n=1):
    return "a%d" % base if n == 1 else "a[%d:%d]" % (base, base + n - 1)


def sr(base, n=1):
    return "s%d" % base if n == 1 else "s[%d:%d]" % (base, base + n - 1)
```

```python
from common import *


def wscale(k, so, srd_ws, vtmp, vl16, sdst):
    k.tag = "wmax"
    bload(k, so, vr(vtmp, 4), 4, vl16, srd_ws, WMAX)


def wscale_finish(k, vtmp, sdst):
    k.wait("wmax")
    k("v_max_u32 v%d, v%d, v%d" % (vtmp, vtmp, vtmp + 1))
    k("v_max_u32 v%d, v%d, v%d" % (vtmp + 2, vtmp + 2, vtmp + 3))
    k("v_max_u32 v%d, v%d, v%d" % (vtmp, vtmp, vtmp + 2))
    wave_reduce(k, [vtmp], "v_max_u32")
    k("v_readlane_b32 s%d, v%d, 63" % (sdst, vtmp))
    k("s_lshr_b32 s%d, s%d, 7" % (sdst, sdst))
    k("s_sub_i32 s%d, 253, s%d" % (sdst, sdst))
    k("s_max_i32 s%d, s%d, 1" % (sdst, sdst))


def gen_prep(k):
    from k4 import k4_classes, prep_rowpats, prep_cols
    k.label("k2_prep")
    k("s_cmp_ge_u32 s2, 256")
    k("s_cbranch_scc1 k2_end2")
    k("s_load_dwordx2 s[4:5], s[0:1], 32")
    k("s_load_dwordx2 s[6:7], s[0:1], 56")
    k("s_load_dwordx2 s[10:11], s[0:1], 80")
    k("v_and_b32 v1, 63, v0")
    k("v_lshrrev_b32 v2, 6, v0")
    k("v_lshlrev_b32 v3, 4, v1")
    k("v_readfirstlane_b32 s32, v2")
    k("s_sub_u32 s3, s2, 168")
    prep_rowpats(k)
    k("s_lshl_b32 s35, s32, 10")
    k("v_add_u32 v6, s35, v3")
    k("s_mul_i32 s35, s32, 768")
    k("s_add_u32 s35, s35, 81920")
    k("v_add_u32 v7, s35, v3")
    k("v_cmp_le_u32 vcc, 48, v1")
    k("v_mov_b32 v8, 0x7f000000")
    k("v_cndmask_b32 v7, v7, v8, vcc")
    k("s_waitcnt lgkmcnt(0)")
    srd(k, 12, 4, 0, 640 * 3456)
    srd(k, 16, 6, 0, 864 * 1280)
    srd(k, 24, 10, WINF, 16 * WIMG)
    srd(k, 28, 10, WOUTF, 8 * WOIMG)
    R = 32
    for i in range(4):
        k("s_add_u32 s48, s3, %d" % (88 * i))
        k("s_min_u32 s48, s48, 319")
        k("s_mul_i32 s34, s48, 3277")
        k("s_lshr_b32 s34, s34, 16")
        k("s_mul_i32 s49, s34, 20")
        k("s_sub_u32 s49, s48, s49")
        k4_classes(k)
        prep_cols(k, 16, 17)
        k("s_lshr_b32 s35, s49, 2")
        k("s_mul_i32 s35, s35, 160")
        k("s_and_b32 s36, s49, 3")
        k("s_lshl_b32 s36, s36, 3")
        k("s_add_u32 s35, s35, s36")
        k("s_mul_i32 s36, s49, 160")
        k("s_sub_u32 s36, s36, %d" % (16 * 160 - 128))
        k("s_cmp_lt_u32 s49, 16")
        k("s_cselect_b32 s35, s35, s36")
        k("s_cselect_b64 vcc, -1, 0")
        k("s_mul_i32 s35, s35, 3456")
        k("v_cndmask_b32 v18, v11, v10, vcc")
        k("v_cndmask_b32 v19, v13, v12, vcc")
        k("v_add_u32 v18, v18, v16")
        k("v_add_u32 v19, v19, v17")
        k("buffer_load_dwordx4 %s, v18, s[12:15], s35 offen" % vr(R + 8 * i, 4))
        k("buffer_load_dwordx4 %s, v19, s[12:15], s35 offen" % vr(R + 8 * i + 4, 4))
        k("s_mul_i32 s36, s34, %d" % WIMG)
        k("s_lshl_b32 s37, s49, 12")
        k("s_add_u32 s%d, s36, s37" % (52 + 2 * i))
        k("s_mul_i32 s37, s49, 3072")
        k("s_add_u32 s%d, s36, s37" % (53 + 2 * i))
    k("s_lshl_b32 s33, s3, 2")
    k("s_add_u32 s33, s33, s32")
    for i in range(4):
        k("s_add_u32 s48, s33, %d" % (352 * i))
        k("s_min_u32 s48, s48, 1079")
        k("s_mul_i32 s34, s48, 7768")
        k("s_lshr_b32 s34, s34, 20")
        k("s_mul_i32 s49, s34, 135")
        k("s_sub_u32 s49, s48, s49")
        k("s_lshl_b32 s35, s49, 6")
        k("v_add_u32 v16, s35, v1")
        k("v_mul_u32_u24 v17, 6554, v16")
        k("v_lshrrev_b32 v17, 16, v17")
        k("v_mul_u32_u24 v18, %d, v17" % (1280 - 160))
        k("v_lshl_add_u32 v18, v16, 4, v18")
        k("s_mul_i32 s35, s34, 160")
        k("buffer_load_dwordx4 %s, v18, s[16:19], s35 offen" % vr(R + 32 + 4 * i, 4))
        k("s_lshl_b32 s%d, s48, 10" % (60 + i))
    for i in range(4):
        k("s_waitcnt vmcnt(%d)" % (11 - 2 * i + 2 * i))
        k("buffer_store_dwordx4 %s, v6, s[24:27], s%d offen" % (vr(R + 8 * i, 4), 52 + 2 * i))
        k("s_waitcnt vmcnt(%d)" % (11 - 2 * i - 1 + 2 * i + 1))
        k("buffer_store_dwordx4 %s, v7, s[24:27], s%d offen" % (vr(R + 8 * i + 4, 4), 53 + 2 * i))
    for i in range(4):
        k("s_waitcnt vmcnt(11)")
        k("buffer_store_dwordx4 %s, v3, s[28:31], s%d offen" % (vr(R + 32 + 4 * i, 4), 60 + i))
    k.label("k2_end2")
    k("s_endpgm")


def gen_k2():
    k = Kern("k2_kernel")
    so = SOff(k, 40)
    NC = 2
    k("s_and_b32 s3, s2, 7")
    k("s_mul_i32 s3, s3, 21")
    k("s_lshr_b32 s33, s2, 3")
    k("s_add_u32 s3, s3, s33")
    k("s_cmp_ge_u32 s2, 168")
    k("s_cbranch_scc1 k2_prep")
    k("s_cmp_ge_u32 s3, 161")
    k("s_cbranch_scc1 k2_end")
    k.stamp("start")
    k("s_load_dwordx2 s[10:11], s[0:1], 80")
    table_srd(k, 28, "k2")
    k("s_lshl_b32 s33, s3, 5")
    k("s_add_u32 s33, s33, %d" % TB.off["k2_slot"])
    k("s_load_dwordx8 s[52:59], s[28:29], s33")
    k("v_and_b32 v1, 63, v0")
    k("v_lshrrev_b32 v2, 6, v0")
    k("v_lshlrev_b32 v3, 4, v1")
    k("v_readfirstlane_b32 s32, v2")
    k("v_lshlrev_b32 v4, 5, v1")
    k("v_lshlrev_b32 v5, 5, v0")
    k("v_mul_u32_u24 v6, %d, v0" % YBLK)
    aF1, aG3, aG1, aF3 = 0, 32, 64, 96
    A, TW1, TW2, W, WM = 16, 80, 96, 112, 128
    k("s_lshl_b32 s34, s32, 13")
    k("s_lshl_b32 s35, s32, 12")
    k("s_lshr_b32 s36, s32, 1")
    k("s_lshl_b32 s36, s36, 14")
    k.tag = "F1"
    for i in range(8):
        bload(k, so, ar(aF1 + 4 * i, 4), 4, "v3", 28, TB.off["k2_F1"] + 1024 * i, base=34)
    k("s_waitcnt lgkmcnt(0)")
    k("s_mov_b32 s37, s52")
    srd(k, 24, 10, 0, WS_END)
    for c in range(NC):
        k.tag = "A%d" % c
        for ks in range(4):
            for mt in range(2):
                bload(k, so, vr(A + c * 32 + (mt * 4 + ks) * 4, 4), 4, "v4", 24, XD + c * 163840 + ks * 2048 + mt * 16, base=37)
    wscale(k, so, 24, WM, "v3", 41)
    k.tag = "tw1"
    for i in range(4):
        bload(k, so, vr(TW1 + 4 * i, 4), 4, "v3", 28, TB.off["k2_tw1"] + 1024 * i, base=35)
    k.tag = "G3"
    for i in range(8):
        bload(k, so, ar(aG3 + 4 * i, 4), 4, "v3", 28, TB.off["k2_G3"] + 1024 * i)
    k.tag = "W"
    for c in range(NC):
        for h in range(2):
            bload(k, so, vr(W + c * 8 + h * 4, 4), 4, "v5", 24, WT + c * 163840 + h * 16, base=37)
    k.tag = "G1"
    for i in range(8):
        bload(k, so, ar(aG1 + 4 * i, 4), 4, "v3", 28, TB.off["k2_G1i"] + 1024 * i)
    k.tag = "tw2"
    for i in range(4):
        bload(k, so, vr(TW2 + 4 * i, 4), 4, "v3", 28, TB.off["k2_tw2"] + 1024 * i, base=35)
    k.stamp("issued")
    D = 132
    P = 164
    TMP = 180
    WS = 196
    f3i = 0
    for c in range(NC):
        k.wait("A%d" % c)
        for ks in range(4):
            for mt in range(2):
                for cp in range(2):
                    d = D + c * 16 + (mt * 2 + cp) * 4
                    k("v_mfma_f32_16x16x32_f16 %s, %s, %s, %s" % (vr(d, 4), vr(A + c * 32 + (mt * 4 + ks) * 4, 4),
                                                              ar(aF1 + (ks * 2 + cp) * 4, 4), "0" if ks == 0 else vr(d, 4)))
                if c == 0:
                    k.tag = "F3"
                    for _ in range(2):
                        bload(k, so, ar(aF3 + 4 * f3i, 4), 4, "v3", 28, TB.off["k2_F3i"] + 1024 * f3i, base=36)
                        f3i += 1
    k.stamp("step1")
    wscale_finish(k, WM, 41)
    k("s_lshl_b32 s42, s41, 7")
    k("s_lshl_b32 s43, s41, 23")
    k.wait("tw1")
    for c in range(NC):
        for mt in range(2):
            d = D + c * 16 + mt * 8
            items = [(P + c * 8 + mt * 4 + r, d + r, d + 4 + r, TW1 + (mt * 4 + r) * 2, TW1 + (mt * 4 + r) * 2 + 1) for r in range(4)]
            cmul_batch(k, items, [TMP + j for j in range(8)])
    k.wait("G3")
    for c in range(NC):
        for t in range(4):
            d = D + c * 16 + t * 4
            for mt in range(2):
                k("v_mfma_f32_16x16x32_f16 %s, %s, %s, %s" % (vr(d, 4), ar(aG3 + (t * 2 + mt) * 4, 4), vr(P + c * 8 + mt * 4, 4),
                                                          "0" if mt == 0 else vr(d, 4)))
    k.stamp("step3")
    k.wait("W")
    for c in range(NC):
        for e in range(8):
            k("v_dot2_f32_bf16 v%d, v%d, s42, 0" % (WS + 2 * e, W + c * 8 + e))
            k("v_dot2_f32_bf16 v%d, v%d, s43, 0" % (WS + 2 * e + 1, W + c * 8 + e))
        items = [(P + c * 8 + e, D + c * 16 + (e >> 1) * 4 + (e & 1) * 2, D + c * 16 + (e >> 1) * 4 + (e & 1) * 2 + 1,
                  WS + 2 * e, WS + 2 * e + 1) for e in range(8)]
        cmul_batch(k, items, [TMP + j for j in range(16)])
    k.wait("G1")
    for c in range(NC):
        for at in range(2):
            for cp in range(2):
                d = D + c * 16 + (at * 2 + cp) * 4
                for u in range(2):
                    k("v_mfma_f32_16x16x32_f16 %s, %s, %s, %s" % (vr(d, 4), vr(P + c * 8 + u * 4, 4),
                                                              ar(aG1 + ((u * 2 + at) * 2 + cp) * 4, 4), "0" if u == 0 else vr(d, 4)))
    k("s_lshl_b32 s38, s32, 11")
    k("v_add_u32 v7, s38, v3")
    k("s_and_b32 s38, s32, 1")
    k("s_lshl_b32 s38, s38, 10")
    k("v_add_u32 v8, s38, v3")
    k.stamp("inv1")
    k.wait("tw2")
    for c in range(NC):
        for at in range(2):
            d = D + c * 16 + at * 8
            items = [(P + c * 8 + at * 4 + r, d + r, d + 4 + r, TW2 + (at * 4 + r) * 2, TW2 + (at * 4 + r) * 2 + 1) for r in range(4)]
            cmul_batch(k, items, [TMP + j for j in range(8)])
            k("ds_write_b128 v7, %s offset:%d" % (vr(P + c * 8 + at * 4, 4), c * 8192 + at * 1024))
    k("s_waitcnt lgkmcnt(0)")
    k("s_barrier")
    k.stamp("barrier")
    Bf = A
    for c in range(NC):
        k.tag = "L%d" % c
        for kw in range(4):
            k("ds_read_b128 %s, v8 offset:%d" % (vr(Bf + c * 16 + kw * 4, 4), c * 8192 + kw * 2048))
    k.wait("F3")
    for c in range(NC):
        k.waitl("L%d" % c)
        for kw in range(4):
            for t in range(4):
                d = D + c * 16 + t * 4
                k("v_mfma_f32_16x16x32_f16 %s, %s, %s, %s" % (vr(d, 4), ar(aF3 + (t * 4 + kw) * 4, 4), vr(Bf + c * 16 + kw * 4, 4),
                                                          "0" if kw == 0 else vr(d, 4)))
    k.stamp("inv3")
    srd(k, 48, 10, YD, 256 * YBLK)
    for c in range(NC):
        for e in range(8):
            d = D + c * 16 + (e >> 1) * 4 + (e & 1) * 2
            k("v_cvt_pk_f16_f32 v%d, v%d, v%d" % (P + c * 8 + e, d, d + 1))
        for sl in range(2):
            k("s_cmp_eq_u32 s%d, 0x%x" % (53 + c * 2 + sl, NOSLOT))
            k.settle()
            k("s_cbranch_scc1 k2_sk%d%d" % (c, sl))
            for h in range(2):
                k("buffer_store_dwordx4 %s, v6, s[48:51], s%d offen offset:%d" % (vr(P + c * 8 + h * 4, 4), 53 + c * 2 + sl, 16 * h))
            k.label("k2_sk%d%d" % (c, sl))
    k.stamp_flush(1)
    k.label("k2_end")
    k("s_endpgm")
    gen_prep(k)
    return k, (256, 256, 16384)
```

```python
from common import *

BIG = 0x7f000000
C0 = -2.0 * np.sqrt(2.0 / np.pi) * np.log2(np.e)
C1 = C0 * 0.044715
IMB = 80 * 1056


def gelu_consts(k, base):
    for i, v in enumerate((C0, C0, C1, C1, 1.0, 1.0)):
        k("v_mov_b32 v%d, %s" % (base + i, f32hex(v)))


def gelu_pairs(k, pairs, tmps, cb):
    def P(r):
        return vr(r, 2)
    n = len(pairs)
    for i, (a, d) in enumerate(pairs):
        k("v_cvt_pk_bf16_f32 v%d, v%d, v%d" % (tmps[2 * i], a, a + 1))
    for i, (a, d) in enumerate(pairs):
        k("v_lshlrev_b32 v%d, 16, v%d" % (a, tmps[2 * i]))
        k("v_and_b32 v%d, 0xffff0000, v%d" % (a + 1, tmps[2 * i]))
    for i, (a, d) in enumerate(pairs):
        k("v_pk_mul_f32 %s, %s, %s" % (P(tmps[2 * i]), P(a), P(a)))
    for i, (a, d) in enumerate(pairs):
        k("v_pk_fma_f32 %s, %s, %s, %s" % (P(tmps[2 * i]), P(tmps[2 * i]), P(cb + 2), P(cb)))
    for i, (a, d) in enumerate(pairs):
        k("v_pk_mul_f32 %s, %s, %s" % (P(tmps[2 * i]), P(tmps[2 * i]), P(a)))
    for i, (a, d) in enumerate(pairs):
        k("v_exp_f32 v%d, v%d" % (tmps[2 * i], tmps[2 * i]))
        k("v_exp_f32 v%d, v%d" % (tmps[2 * i + 1], tmps[2 * i + 1]))
    for i, (a, d) in enumerate(pairs):
        k("v_pk_add_f32 %s, %s, %s" % (P(tmps[2 * i]), P(tmps[2 * i]), P(cb + 4)))
    for i, (a, d) in enumerate(pairs):
        k("v_rcp_f32 v%d, v%d" % (tmps[2 * i], tmps[2 * i]))
        k("v_rcp_f32 v%d, v%d" % (tmps[2 * i + 1], tmps[2 * i + 1]))
    for i, (a, d) in enumerate(pairs):
        k("v_pk_mul_f32 %s, %s, %s" % (P(a), P(a), P(tmps[2 * i])))
    for i, (a, d) in enumerate(pairs):
        k("v_cvt_pk_bf16_f32 v%d, v%d, v%d" % (d, a, a + 1))


def rowperm(k, dst, c, tmp):
    k("v_lshrrev_b32 v%d, 2, v%d" % (tmp, c))
    k("v_and_b32 v%d, 3, v%d" % (dst, c))
    k("v_lshl_add_u32 v%d, v%d, 3, v%d" % (dst, tmp, dst))


def k0_of(ks):
    if ks < 16:
        return 160 * (ks >> 2) + 8 * (ks & 3), 1
    return 160 * (ks - 16) + 128, 2


def k4_classes(k):
    k("s_lshl_b32 s35, s34, 2")
    k("s_mul_i32 s36, s34, 3")
    k("s_add_u32 s37, s36, 6")
    k("s_cmp_lt_u32 s34, 6")
    k("s_cselect_b32 s41, s35, s37")
    k("s_cselect_b32 s42, 4, 3")
    k("s_cselect_b32 s44, 1, 0")
    k("s_sub_u32 s37, s35, 10")
    k("s_cmp_lt_u32 s34, 10")
    k("s_cselect_b32 s43, s36, s37")
    k("s_sub_u32 s43, s43, s44")


def prep_rowpats(k):
    k("v_lshrrev_b32 v4, 3, v1")
    k("v_and_b32 v14, 7, v1")
    k("v_lshlrev_b32 v14, 4, v14")
    k("s_lshr_b32 s35, s32, 1")
    k("s_and_b32 s36, s32, 1")
    k("s_lshl_b32 s37, s35, 1")
    k("s_lshl_b32 s38, s36, 5")
    k("s_add_u32 s37, s37, s38")
    k("s_lshl_b32 s38, s35, 3")
    k("s_lshl_b32 s39, s36, 1")
    k("s_add_u32 s38, s38, s39")
    k("v_lshrrev_b32 v9, 2, v4")
    k("v_bfe_u32 v5, v4, 1, 1")
    k("v_and_b32 v4, 1, v4")
    k("v_lshl_add_u32 v10, v9, 6, v4")
    k("v_lshl_add_u32 v10, v5, 2, v10")
    k("v_lshl_add_u32 v11, v9, 2, v4")
    k("v_lshl_add_u32 v11, v5, 4, v11")
    k("v_add_u32 v10, s37, v10")
    k("v_add_u32 v11, s38, v11")
    k("v_mul_u32_u24 v10, 3456, v10")
    k("v_mul_u32_u24 v11, 3456, v11")
    k("s_lshl_b32 s37, s35, 6")
    k("s_lshl_b32 s38, s36, 2")
    k("s_add_u32 s37, s37, s38")
    k("s_lshl_b32 s38, s35, 2")
    k("s_lshl_b32 s39, s36, 4")
    k("s_add_u32 s38, s38, s39")
    k("v_mul_u32_u24 v4, 43, v1")
    k("v_lshrrev_b32 v4, 8, v4")
    k("v_mul_u32_u24 v5, 6, v4")
    k("v_sub_u32 v5, v1, v5")
    k("v_lshlrev_b32 v15, 4, v5")
    k("v_and_b32 v4, 7, v4")
    row8, d1, d2, t = 4, 12, 13, 9
    k("v_lshrrev_b32 v%d, 2, v%d" % (t, row8))
    k("v_and_b32 v%d, 1, v%d" % (d1, row8))
    k("v_lshl_add_u32 v%d, v%d, 1, v%d" % (d1, t, d1))
    k("v_and_b32 v%d, 3, v%d" % (d2, row8))
    k("v_lshl_add_u32 v%d, v%d, 3, v%d" % (d2, t, d2))
    k("v_bfe_u32 v%d, v%d, 1, 1" % (t, row8))
    k("v_lshl_add_u32 v%d, v%d, 5, v%d" % (d1, t, d1))
    k("v_add_u32 v%d, s37, v%d" % (d1, d1))
    k("v_add_u32 v%d, s38, v%d" % (d2, d2))
    k("v_mul_u32_u24 v%d, 3456, v%d" % (d1, d1))
    k("v_mul_u32_u24 v%d, 3456, v%d" % (d2, d2))


def prep_cols(k, da, db):
    k("s_add_u32 s45, s41, 54")
    k("s_lshl_b32 s45, s45, 5")
    k("s_lshl_b32 s46, s43, 5")
    k("s_sub_u32 s47, s46, 96")
    k("s_sub_u32 s47, s47, s45")
    k("s_cmp_lt_u32 s34, 6")
    k("s_cselect_b32 s47, 0, s47")
    k("v_mov_b32 v9, s47")
    k("v_cmp_le_u32 vcc, 96, v14")
    k("v_cndmask_b32 v9, 0, v9, vcc")
    k("v_add3_u32 v%d, v14, s45, v9" % da)
    k("s_add_u32 s46, s46, 32")
    k("v_add_u32 v%d, s46, v15" % db)


def gen_k4():
    import os
    X = os.environ.get("K4X", "")
    k = Kern("k4_kernel")
    so = SOff(k, 40)
    k("s_cmp_ge_u32 s2, 256")
    k("s_cbranch_scc1 k4_end")
    k.stamp("start")
    k("s_load_dwordx2 s[10:11], s[0:1], 80")
    k("v_and_b32 v1, 63, v0")
    k("v_lshrrev_b32 v2, 6, v0")
    k("v_lshlrev_b32 v3, 4, v1")
    k("v_readfirstlane_b32 s32, v2")
    k("s_bfe_u32 s33, s2, 0x20001")
    k("s_lshl_b32 s33, s33, 2")
    k("s_lshr_b32 s34, s2, 6")
    k("s_add_u32 s33, s33, s34")
    k("s_and_b32 s34, s2, 1")
    k("s_lshl_b32 s34, s34, 3")
    k("s_bfe_u32 s35, s2, 0x30003")
    k("s_add_u32 s34, s34, s35")
    k("s_lshl_b32 s52, s33, 2")
    k("s_add_u32 s52, s52, s32")
    k("s_mul_i32 s35, s52, 40960")
    k("v_add_u32 v6, s35, v3")
    k("v_add_u32 v7, 20480, v6")
    k4_classes(k)
    k("s_mul_i32 s48, s32, 1056")
    k("s_mul_i32 s49, s32, 768")
    k("s_add_u32 s49, s49, %d" % IMB)
    k("v_lshrrev_b32 v4, 2, v1")
    k("v_and_b32 v5, 3, v1")
    k("v_lshlrev_b32 v5, 3, v5")
    TA = 16
    k("v_bfe_u32 v8, v1, 3, 2")
    k("v_mul_u32_u24 v16, 1056, v8")
    k("v_lshrrev_b32 v8, 5, v1")
    k("v_lshl_add_u32 v16, v8, 8, v16")
    k("v_bfe_u32 v8, v1, 2, 1")
    k("v_lshl_add_u32 v16, v8, 7, v16")
    k("v_add_u32 v16, v16, v5")
    k("v_add_u32 v17, %d, v16" % (10 * 4224))
    k("v_mul_u32_u24 v24, 96, v4")
    k("v_add_u32 v24, v24, v5")
    k("v_add_u32 v24, %d, v24" % IMB)
    k("s_waitcnt lgkmcnt(0)")
    srd(k, 12, 10, HN, 2048 * 1280)
    srd(k, 16, 10, WINF, 16 * WIMG)
    k("s_mul_i32 s50, s34, %d" % WIMG)
    k("s_lshl_b32 s51, s32, 10")
    k("s_add_u32 s51, s51, s50")
    k("v_add_u32 v10, s51, v3")
    k("s_mul_i32 s51, s32, 768")
    k("s_add_u32 s51, s51, s50")
    k("s_add_u32 s51, s51, 81920")
    k("v_add_u32 v12, s51, v3")
    srd(k, 24, 10, 0, WS_END)

    def dmaA(ks):
        k("s_add_u32 m0, s48, %d" % (ks * 4224))
        k("s_mov_b32 s50, %d" % (ks * 4096))
        k("buffer_load_dwordx4 v10, s[16:19], s50 offen lds")

    def dmaB(ks):
        k("s_add_u32 m0, s49, %d" % (ks * 3072))
        k("s_mov_b32 s50, %d" % (ks * 3072))
        k("buffer_load_dwordx4 v12, s[16:19], s50 offen lds")

    k.stamp("pre")
    for st in range(4):
        k.tag = "st%d" % st
        for ks in range(5 * st, 5 * st + 5):
            if "a" not in X:
                dmaA(ks)
            for e in range(2):
                if "h" not in X or (ks % 5 == 0 and e == 0):
                    bload(k, so, ar((e * 20 + ks) * 4, 4), 4, "v%d" % (6 + e), 12, ks * 1024)
    k.tag = "B"
    k("s_mov_b32 exec_hi, 0xffff")
    for ks in range(20):
        if "b" not in X or ks == 0:
            dmaB(ks)
    k("s_mov_b32 exec_hi, -1")
    k.stamp("issued")
    BB, D2, D1, ZP, CB, S, TMP = 32, 64, 96, 128, 144, 152, 168
    gelu_consts(k, CB)

    def mm_pass(img, slots, staged):
        n = len(slots)

        def rd(ks):
            for u in range(n):
                for ip in range(2):
                    dst = vr(BB + (ks & 1) * 16 + u * 4 + 2 * ip, 2)
                    if img == 0:
                        off = (ks % 10) * 4224 + ip * 512 + u * 32
                        k("ds_read_b64_tr_b16 %s, v%d offset:%d" % (dst, TA + ks // 10, off))
                    else:
                        k("ds_read_b64_tr_b16 %s, v24 offset:%d" % (dst, ks * 3072 + ip * 1536 + u * 32))
        for ks in range(20):
            if ks % 5 == 0 and staged:
                k.wait("st%d" % (ks // 5))
                k("s_barrier")
                if n_var[0] == 4:
                    k.stamp("st%d" % (ks // 5))
                else:
                    k.restamp()
                rd(ks)
            elif ks == 0:
                rd(ks)
            nxt = ks + 1 < 20 and not (staged and (ks + 1) % 5 == 0)
            if nxt:
                rd(ks + 1)
                k("s_waitcnt lgkmcnt(%d)" % (2 * n))
            else:
                k("s_waitcnt lgkmcnt(0)")
            for u, (D, tr) in enumerate(slots):
                for e in range(2):
                    d = D + e * 16
                    a = ar((e * 20 + ks) * 4, 4)
                    b = vr(BB + (ks & 1) * 16 + u * 4, 4)
                    if tr:
                        a, b = b, a
                    k("v_mfma_f32_16x16x32_bf16 %s, %s, %s, %s" % (vr(d, 4), a, b, "0" if ks == 0 else vr(d, 4)))

    vm_save = list(k.vm)
    n_var = [4]
    st_save = len(k.stamps)
    for n in (4, 3):
        n_var[0] = n
        k.rs = st_save
        k.vm = list(vm_save)
        if n == 4:
            k("s_cmp_eq_u32 s42, 3")
            k.settle()
            k("s_cbranch_scc1 k4_z2n3")
        else:
            k.label("k4_z2n3")
        mm_pass(0, [(D2 + 4 * u, False) for u in range(3)] + [(D2 + 12, False) if n == 4 else (D1, True)], True)
        for i in range(16):
            k("v_mov_b32 v%d, 0" % (S + i))
        for u in range(n):
            pairs = [(D2 + e * 16 + u * 4 + 2 * hh, ZP + u * 4 + e * 2 + hh) for e in range(2) for hh in range(2)]
            gelu_pairs(k, pairs, [TMP + i for i in range(8)], CB)
            for (a, d) in pairs:
                k("v_lshlrev_b32 v%d, 16, v%d" % (a, d))
                k("v_and_b32 v%d, 0xffff0000, v%d" % (a + 1, d))
            for e in range(2):
                for hh in range(2):
                    a = D2 + e * 16 + u * 4 + 2 * hh
                    s_, q_ = S + e * 4 + 2 * hh, S + 8 + e * 4 + 2 * hh
                    k("v_pk_add_f32 %s, %s, %s" % (vr(s_, 2), vr(s_, 2), vr(a, 2)))
                    k("v_pk_fma_f32 %s, %s, %s, %s" % (vr(q_, 2), vr(a, 2), vr(a, 2), vr(q_, 2)))
        if n == 4:
            k.settle()
            k("s_branch k4_z2done")
    k.label("k4_z2done")
    k.stamp("z2+gelu")
    so.cur = None
    def val(m, i):
        b = {0: 0, 1: 2, 2: 1, 3: 3}[i]
        return S + m * 4 + b
    Zr = TMP
    for m in range(4):
        for h2 in range(2):
            a, b = val(m, 2 * h2), val(m, 2 * h2 + 1)
            k("v_add_f32 v%d, v%d, v%d row_mirror bank_mask:0x3" % (Zr + 2 * m + h2, a, a))
    for m in range(4):
        for h2 in range(2):
            a, b = val(m, 2 * h2), val(m, 2 * h2 + 1)
            k("v_add_f32 v%d, v%d, v%d row_mirror bank_mask:0xc" % (Zr + 2 * m + h2, b, b))
    Yr = TMP + 8
    for m in range(4):
        k("v_add_f32 v%d, v%d, v%d row_half_mirror bank_mask:0x5" % (Yr + m, Zr + 2 * m, Zr + 2 * m))
    for m in range(4):
        k("v_add_f32 v%d, v%d, v%d row_half_mirror bank_mask:0xa" % (Yr + m, Zr + 2 * m + 1, Zr + 2 * m + 1))
    for qp in ("[1,0,3,2]", "[2,3,0,1]"):
        for m in range(4):
            k("v_add_f32 v%d, v%d, v%d quad_perm:%s" % (Yr + m, Yr + m, Yr + m, qp))
    k("s_lshl_b32 s47, s33, 4")
    k("s_add_u32 s48, s47, s34")
    k("s_lshl_b32 s48, s48, 10")
    k("s_lshl_b32 s49, s32, 8")
    k("s_add_u32 s48, s48, s49")
    k("v_lshrrev_b32 v10, 2, v1")
    k("v_lshlrev_b32 v10, 4, v10")
    k.tag = "pub"
    bstore(k, so, vr(Yr, 4), 4, "v10", 24, STATS, base=48, mods=" sc1")
    k.wait("B")
    k("s_barrier")
    k.stamp("published")
    k("s_mul_i32 s53, s52, %d" % (2 * 54 * 512))
    k("s_lshl_b32 s54, s43, 9")
    k("s_add_u32 s53, s53, s54")
    k("s_add_u32 s53, s53, 0x%x" % Z1)
    k("s_add_u32 s54, s53, %d" % (54 * 512))
    k("v_lshlrev_b32 v13, 3, v1")
    mm_pass(1, [(D1 + 4 + 4 * u, True) for u in range(3)], False)
    k("s_lshl_b32 s48, s33, 14")
    k("s_add_u32 s48, s48, s49")
    k("s_add_u32 s48, s48, 0x%x" % STATS)
    k("v_and_b32 v12, 3, v1")
    k("v_lshl_add_u32 v10, v12, 12, v10")
    L = BB
    for b in (1, 2, 3, 0):
        if b == 3:
            k("s_cmp_lt_u32 s34, 6")
            k("s_cselect_b32 s55, 1, 0")
            k("s_cmp_ge_u32 s34, 10")
            k("s_cselect_b32 s55, 1, s55")
            k("s_cmp_eq_u32 s55, 0")
            k.settle()
            k("s_cbranch_scc1 k4_z1sk3")
        if b == 0:
            k.label("k4_z1sk3")
            for i in range(4):
                k("buffer_load_dwordx4 %s, v10, s[24:27], s48 offen offset:%d sc1" % (vr(L + 4 * i, 4), 1024 * i))
            k("s_cmp_lt_u32 s34, 6")
            k.settle()
            k("s_cbranch_scc1 k4_z1done")
        pairs = [(D1 + e * 16 + b * 4 + 2 * hh, TMP + 8 + e * 2 + hh) for e in range(2) for hh in range(2)]
        gelu_pairs(k, pairs, [TMP + i for i in range(8)], CB)
        for e in range(2):
            k("buffer_store_dwordx2 %s, v13, s[24:27], s%d offen offset:%d" % (vr(TMP + 8 + e * 2, 2), 53 + e, b * 512))
    k.label("k4_z1done")
    k.stamp("z1+gelu")
    so.cur = None
    k("s_mov_b32 s55, 0")
    k.label("k4_poll")
    k("s_waitcnt vmcnt(0)")
    k("v_max3_u32 v12, v%d, v%d, v%d" % (L, L + 1, L + 2))
    for i in range(3, 15, 2):
        k("v_max3_u32 v12, v12, v%d, v%d" % (L + i, L + i + 1))
    k("v_max_u32 v12, v12, v%d" % (L + 15))
    k("v_cmp_eq_u32 vcc, -1, v12")
    k("s_cmp_eq_u64 vcc, 0")
    k("s_cbranch_scc1 k4_ready")
    k("s_add_u32 s55, s55, 1")
    k("s_cmp_gt_u32 s55, 0x20000")
    k("s_cbranch_scc1 k4_ready")
    for i in range(4):
        k("buffer_load_dwordx4 %s, v10, s[24:27], s48 offen offset:%d sc1" % (vr(L + 4 * i, 4), 1024 * i))
    k("s_branch k4_poll")
    k.label("k4_ready")
    k.stamp("polled")
    for i in (1, 2, 3):
        for h2 in range(2):
            k("v_pk_add_f32 %s, %s, %s" % (vr(L + 2 * h2, 2), vr(L + 2 * h2, 2), vr(L + 4 * i + 2 * h2, 2)))
    for qp in ("[1,0,3,2]", "[2,3,0,1]"):
        for m in range(4):
            k("v_add_f32 v%d, v%d, v%d quad_perm:%s" % (L + m, L + m, L + m, qp))
    inv = f32hex(1.0 / 864)
    for e in range(2):
        k("v_mul_f32 v%d, %s, v%d" % (L + e, inv, L + e))
        k("v_mul_f32 v%d, %s, v%d" % (L + 2 + e, inv, L + 2 + e))
        k("v_fma_f32 v%d, -v%d, v%d, v%d" % (L + 2 + e, L + e, L + e, L + 2 + e))
        k("v_max_f32 v%d, 0, v%d" % (L + 2 + e, L + 2 + e))
    stats_to_scale(k, [(L + e, L + 2 + e, L + 4 + e) for e in range(2)])
    k("s_lshl_b32 s53, s41, 16")
    k("s_lshl_b32 s54, s52, 10")
    k("s_add_u32 s53, s53, s54")
    for u in range(4):
        if u == 3:
            k("s_cmp_eq_u32 s42, 3")
            k.settle()
            k("s_cbranch_scc1 k4_fin")
        for e in range(2):
            for r in range(4):
                a = D2 + e * 16 + u * 4 + r
                k("v_subrev_f32 v%d, v%d, v%d row_newbcast:%d" % (a, L + e, a, 4 * r))
        for e in range(2):
            for hh in range(2):
                a = D2 + e * 16 + u * 4 + 2 * hh
                t = L + 8 + e * 2 + hh
                k("v_cvt_pk_bf16_f32 v%d, v%d, v%d" % (t, a, a + 1))
                k("v_lshlrev_b32 v%d, 16, v%d" % (a, t))
                k("v_and_b32 v%d, 0xffff0000, v%d" % (a + 1, t))
        for e in range(2):
            for r in range(4):
                a = D2 + e * 16 + u * 4 + r
                k("v_mul_f32 v%d, v%d, v%d row_newbcast:%d" % (a, L + 2 + e, a, 4 * r))
        for e in range(2):
            for hh in range(2):
                a = D2 + e * 16 + u * 4 + 2 * hh
                k("v_cvt_pk_bf16_f32 v%d, v%d, v%d" % (ZP + u * 4 + e * 2 + hh, a, a + 1))
        bstore(k, so, vr(ZP + u * 4, 4), 4, "v3", 24, Z2N + u * 65536, base=53)
    k.label("k4_fin")
    k.stamp_flush(3)
    k.label("k4_end")
    k("s_endpgm")
    return k, (256, 256, IMB + 640 * 96)


def gen_all():
    out = [gen_k4()]
    try:
        import k5
        out += k5.gen_all()
    except ImportError:
        pass
    return out
```

```python
from common import *
from k4 import rowperm, BIG


def wgmap(k):
    k("s_bfe_u32 s33, s2, 0x20001")
    k("s_lshl_b32 s33, s33, 3")
    k("s_lshr_b32 s34, s2, 5")
    k("s_add_u32 s33, s33, s34")
    k("s_and_b32 s34, s2, 1")
    k("s_lshl_b32 s34, s34, 2")
    k("s_bfe_u32 s35, s2, 0x20003")
    k("s_add_u32 s34, s34, s35")


def lanes(k):
    k("v_and_b32 v1, 63, v0")
    k("v_lshrrev_b32 v2, 6, v0")
    k("v_lshlrev_b32 v3, 4, v1")
    k("v_readfirstlane_b32 s32, v2")
    k("v_lshrrev_b32 v4, 4, v1")
    k("v_and_b32 v5, 15, v1")


def lds_reduce(k, name, nacc, accreg, RD):
    for w in range(4):
        if w < 3:
            k("s_cmp_lg_u32 s32, %d" % w)
            k.settle()
            k("s_cbranch_scc1 %s_w%d" % (name, w + 1))
        for mt in range(4):
            if mt == w:
                continue
            sl = w if w < mt else w - 1
            for i in range(nacc):
                off = ((mt * 3 + sl) * nacc + i) * 1024
                k("ds_write_b128 v%d, %s offset:%d" % ((3, 14)[off >> 16], vr(accreg(mt, i), 4), off & 0xffff))
        for i in range(nacc):
            for q in range(4):
                k("v_mov_b32 v%d, v%d" % (RD + 4 * i + q, accreg(w, i) + q))
        if w < 3:
            k.settle()
            k("s_branch %s_wd" % name)
            k.label("%s_w%d" % (name, w + 1))
    k.label("%s_wd" % name)
    k("s_mul_i32 s36, s32, %d" % (3 * nacc * 1024))
    k("v_add_u32 v15, s36, v3")
    k("s_waitcnt lgkmcnt(0)")
    k("s_barrier")


def gen_k5():
    k = Kern("k5_kernel")
    so = SOff(k, 40)
    k("s_cmp_ge_u32 s2, 256")
    k("s_cbranch_scc1 k5_end")
    k.stamp("start")
    k("s_load_dwordx4 s[4:7], s[0:1], 40")
    k("s_load_dwordx2 s[10:11], s[0:1], 80")
    lanes(k)
    wgmap(k)
    k("s_mul_i32 s35, s34, 7")
    k("s_mul_i32 s36, s34, 6")
    k("s_add_u32 s36, s36, 6")
    k("s_cmp_lt_u32 s34, 6")
    k("s_cselect_b32 s41, s35, s36")
    k("s_cselect_b32 s42, 0, 0x%x" % BIG)
    rowperm(k, 6, 5, 7)
    k("s_lshl_b32 s35, s33, 6")
    k("v_add_u32 v10, s35, v6")
    k("v_xor_b32 v6, v4, v5")
    k("v_lshlrev_b32 v13, 4, v6")
    k("v_lshl_add_u32 v6, v4, 12, v13")
    k("s_lshl_b32 s35, s33, 18")
    k("s_lshl_b32 s36, s32, 10")
    k("s_add_u32 s35, s35, s36")
    k("v_add_u32 v6, s35, v6")
    for q in range(1, 4):
        k("v_xor_b32 v%d, %d, v6" % (6 + q, 64 * q))
        k("v_add_u32 v%d, %d, v%d" % (6 + q, 8 * q * 4096, 6 + q))
    k("s_lshl_b32 s47, s32, 15")
    k("v_lshl_add_u32 v240, v5, 8, v13")
    for q in range(1, 4):
        k("v_xor_b32 v%d, %d, v240" % (240 + q, 64 * q))
    for q in range(4):
        k("v_add_u32 v%d, s47, v%d" % (240 + q, 240 + q))
    k("s_lshl_b32 s35, s41, 16")
    k("s_lshl_b32 s36, s32, 14")
    k("s_add_u32 s35, s35, s36")
    k("v_add_u32 v11, s35, v3")
    k("v_add_u32 v12, s42, v11")
    k("v_add_u32 v14, 0x10000, v3")
    for u in range(7):
        k("s_mov_b32 s%d, %d" % (60 + u, u * 65536))
    k("s_waitcnt lgkmcnt(0)")
    srd(k, 12, 4, 0, 2048 * 4096)
    srd(k, 16, 10, Z2N, 54 * 65536)
    srd(k, 20, 6, 0, 4096)
    srd(k, 24, 10, 0, WS_END)
    NST = 4
    ACC = 16
    ZB = 128

    def issue(ks):
        st = ks % NST
        k.tag = "ks%d" % ks
        if ks % 4 == 0 and ks > 0:
            for u in range(7):
                k("s_add_u32 s%d, s%d, 4096" % (60 + u, 60 + u))
        for u in range(7):
            k("buffer_load_dwordx4 %s, v%d, s[16:19], s%d offen offset:%d" % (vr(ZB + st * 28 + u * 4, 4), 12 if u == 6 else 11, 60 + u, (ks % 4) * 1024))

    def dma(ch):
        k.tag = "ch%d" % ch
        for q in range(16):
            mt = q >> 2
            k("s_add_u32 m0, s47, %d" % ((ch & 1) * 16384 + q * 1024))
            if q & 3 == 0:
                k("s_mov_b32 s46, %d" % ((32 * (mt >> 1) + 4 * (mt & 1)) * 4096 + ch * 256))
            k("buffer_load_dwordx4 v%d, s[12:15], s46 offen lds" % (6 + (q & 3)))

    def rdw(ch, kq):
        k.tag = "r%d_%d" % (ch, kq)
        for mt in range(4):
            k("ds_read_b128 %s, v%d offset:%d" % (ar((ch & 1) * 64 + (kq * 4 + mt) * 4, 4), 240 + kq, (ch & 1) * 16384 + mt * 4096))

    dma(0)
    issue(0)
    issue(1)
    dma(1)
    issue(2)
    issue(3)
    k.stamp("issued")
    k.wait("ch0")
    for kq in range(4):
        rdw(0, kq)
    for ks in range(16):
        st = ks % NST
        ch, kq = ks >> 2, ks & 3
        if kq == 0 and ch + 1 < 4:
            k.wait("ch%d" % (ch + 1))
        k.wait("ks%d" % ks)
        k.waitl("r%d_%d" % (ch, kq))
        if ks in (0, 1, 4, 8, 12):
            k.stamp("ks%d arr" % ks)
        if kq == 1 and ch + 2 < 4:
            k.waitl("r%d_3" % ch)
            dma(ch + 2)
        for u in range(7):
            for mt in range(4):
                d = ACC + (mt * 7 + u) * 4
                k("v_mfma_f32_16x16x32_bf16 %s, %s, %s, %s" % (vr(d, 4), vr(ZB + st * 28 + u * 4, 4), ar((ch & 1) * 64 + (kq * 4 + mt) * 4, 4),
                                                           "0" if ks == 0 else vr(d, 4)))
            if u == 0 and ch + 1 < 4:
                rdw(ch + 1, kq)
        if ks + NST < 16:
            issue(ks + NST)
    k.stamp("mainloop")
    k("s_lshl_b32 s43, s33, 2")
    k("s_add_u32 s43, s43, s32")
    k("s_mul_i32 s44, s43, %d" % (54 * 512))
    k("s_lshl_b32 s45, s41, 9")
    k("s_add_u32 s44, s44, s45")
    k("v_lshlrev_b32 v13, 3, v1")
    ZR = 128
    k.tag = "z1"
    for u in range(7):
        bload(k, so, vr(ZR + 2 * u, 2), 2, "v13", 24, Z1 + u * 512, base=44)
    k("s_lshr_b32 s45, s32, 1")
    k("s_lshl_b32 s45, s45, 5")
    k("s_and_b32 s46, s32, 1")
    k("s_lshl_b32 s46, s46, 2")
    k("s_add_u32 s45, s45, s46")
    k("v_add_u32 v10, s45, v10")
    k("v_lshlrev_b32 v10, 1, v10")
    k("buffer_load_ushort v2, v10, s[20:23], 0 offen")
    RD = 144
    k("s_barrier")
    lds_reduce(k, "k5r", 7, lambda mt, i: ACC + (mt * 7 + i) * 4, RD)
    k.stamp("lds wr+bar")
    T = 16
    for sl in range(3):
        for i in range(7):
            k("ds_read_b128 %s, v15 offset:%d" % (vr(T + (sl * 7 + i) * 4, 4), (sl * 7 + i) * 1024))
    for sl in range(3):
        k("s_waitcnt lgkmcnt(%d)" % min(15, 14 - 7 * sl))
        for i in range(7):
            for h2 in range(2):
                k("v_pk_add_f32 %s, %s, %s" % (vr(RD + 4 * i + 2 * h2, 2), vr(RD + 4 * i + 2 * h2, 2), vr(T + (sl * 7 + i) * 4 + 2 * h2, 2)))
    k("s_waitcnt vmcnt(0)")
    k("v_lshlrev_b32 v2, 16, v2")
    k("s_mul_i32 s44, s43, %d" % (27 * 1024))
    k("v_add_u32 v12, s42, v3")
    for u in range(7):
        r = RD + 4 * u
        t = T + 8 * u
        for h2 in range(2):
            a = r + 2 * h2
            k("v_cvt_pk_bf16_f32 v%d, v%d, v%d" % (t, a, a + 1))
            k("v_lshlrev_b32 v%d, 16, v%d" % (a, t))
            k("v_and_b32 v%d, 0xffff0000, v%d" % (a + 1, t))
            k("v_add_f32 v%d, v%d, v2" % (a, a))
            k("v_add_f32 v%d, v%d, v2" % (a + 1, a + 1))
            k("v_cvt_pk_bf16_f32 v%d, v%d, v%d" % (t, a, a + 1))
            k("v_lshlrev_b32 v%d, 16, v%d" % (a, t))
            k("v_and_b32 v%d, 0xffff0000, v%d" % (a + 1, t))
            k("v_lshlrev_b32 v%d, 16, v%d" % (t + 1, ZR + 2 * u + h2))
            k("v_and_b32 v%d, 0xffff0000, v%d" % (t + 2, ZR + 2 * u + h2))
            k("v_mul_f32 v%d, v%d, v%d" % (a, a, t + 1))
            k("v_mul_f32 v%d, v%d, v%d" % (a + 1, a + 1, t + 2))
            k("v_cvt_pk_bf16_f32 v%d, v%d, v%d" % (t + 4 + h2, a, a + 1))
        k("s_add_u32 s45, s41, %d" % u)
        k("s_lshr_b32 s46, s45, 1")
        k("s_lshl_b32 s46, s46, 10")
        k("s_and_b32 s45, s45, 1")
        k("s_lshl_b32 s45, s45, 3")
        k("s_add_u32 s45, s45, s46")
        k("s_add_u32 s45, s45, s44")
        k("s_add_u32 s45, s45, 0x%x" % UF)
        k("buffer_store_dwordx2 %s, v%d, s[24:27], s45 offen" % (vr(t + 4, 2), 12 if u == 6 else 3))
    k.stamp_flush(4)
    k.label("k5_end")
    k("s_endpgm")
    return k, (256, 256, 128 * 1024)


def gen_k6():
    k = Kern("k6_kernel")
    so = SOff(k, 40)
    k("s_cmp_ge_u32 s2, 256")
    k("s_cbranch_scc1 k6_end")
    k.stamp("start")
    k("s_load_dwordx2 s[4:5], s[0:1], 64")
    k("s_load_dwordx2 s[10:11], s[0:1], 80")
    lanes(k)
    wgmap(k)
    k("s_mul_i32 s35, s33, %d" % (4 * 27 * 1024))
    k("s_mul_i32 s36, s32, %d" % (7 * 1024))
    k("s_add_u32 s35, s35, s36")
    k("v_add_u32 v6, s35, v3")
    k("s_mul_i32 s35, s34, %d" % WOIMG)
    k("s_mul_i32 s47, s32, 35840")
    k("s_add_u32 s35, s35, s47")
    k("v_add_u32 v7, s35, v3")
    k("v_lshrrev_b32 v8, 2, v1")
    k("v_mul_u32_u24 v8, 160, v8")
    k("v_and_b32 v9, 3, v1")
    k("v_mad_u32_u24 v8, v9, 40, v8")
    k("v_add_u32 v8, s47, v8")
    k("v_add_u32 v14, 0x10000, v3")
    k("s_waitcnt lgkmcnt(0)")
    srd(k, 12, 10, UF, 128 * 27 * 1024)
    srd(k, 16, 10, WOUTF, 8 * WOIMG)
    srd(k, 20, 4, 0, 2048 * 1280)
    srd(k, 24, 10, HB, 2048 * 1280)
    ACC = 16
    so2 = SOff(k, 46)
    for i in range(7):
        k.tag = "ks%d" % i
        for q in range(5):
            sx, imm = so2.get(i * 5120 + q * 1024)
            if imm == 0:
                k("s_add_u32 m0, s47, %d" % (i * 5120 + q * 1024))
            k("buffer_load_dwordx4 v7, s[16:19], %s offen offset:%d lds" % (sx, imm))
        for mt in range(4):
            bload(k, so, ar(i * 16 + mt * 4, 4), 4, "v6", 12, (mt * 27 + i) * 1024)
    rowperm(k, 10, 5, 11)
    k("s_lshl_b32 s35, s33, 6")
    k("s_lshr_b32 s45, s32, 1")
    k("s_lshl_b32 s45, s45, 5")
    k("s_and_b32 s46, s32, 1")
    k("s_lshl_b32 s46, s46, 2")
    k("s_add_u32 s45, s45, s46")
    k("s_add_u32 s35, s35, s45")
    k("v_add_u32 v10, s35, v10")
    k("v_mul_u32_u24 v10, 1280, v10")
    k("v_mad_u32_u24 v10, v4, 40, v10")
    k("s_mul_i32 s43, s34, 160")
    k.stamp("issued")
    WB = 128

    def rd6(i):
        k.tag = "w%d" % i
        for ud in range(5):
            for ip in range(2):
                k("ds_read_b64_tr_b16 %s, v8 offset:%d" % (vr(WB + (i & 1) * 20 + ud * 4 + 2 * ip, 2), i * 5120 + ip * 2560 + 8 * ud))
    k.wait("ks0")
    rd6(0)
    for i in range(7):
        if i == 6:
            k("s_cmp_eq_u32 s32, 3")
            k.settle()
            k("s_cbranch_scc1 k6_skip")
        if i + 1 < 7:
            k.wait("ks%d" % (i + 1))
            rd6(i + 1)
        k.waitl("w%d" % i)
        if i in (0, 3):
            k.stamp("ks%d arr" % i)
        for ud in range(5):
            for mt in range(4):
                d = ACC + (mt * 5 + ud) * 4
                k("v_mfma_f32_16x16x32_bf16 %s, %s, %s, %s" % (vr(d, 4), vr(WB + (i & 1) * 20 + ud * 4, 4), ar(i * 16 + mt * 4, 4),
                                                           "0" if i == 0 else vr(d, 4)))
        if i == 0:
            HR = 96
            k.tag = "h"
            k("buffer_load_dwordx4 %s, v10, s[24:27], s43 offen" % vr(HR, 4))
            k("buffer_load_dwordx4 %s, v10, s[24:27], s43 offen offset:16" % vr(HR + 4, 4))
            k("buffer_load_dwordx2 %s, v10, s[24:27], s43 offen offset:32" % vr(HR + 8, 2))
    k.label("k6_skip")
    k("s_waitcnt vmcnt(3) lgkmcnt(0)")
    k("s_barrier")
    k.stamp("mainloop")
    RD = 108
    lds_reduce(k, "k6r", 5, lambda mt, i: ACC + (mt * 5 + i) * 4, RD)
    k.stamp("lds wr+bar")
    T = 16
    for sl in range(3):
        for i in range(5):
            k("ds_read_b128 %s, v15 offset:%d" % (vr(T + (sl * 5 + i) * 4, 4), (sl * 5 + i) * 1024))
    for sl in range(3):
        k("s_waitcnt lgkmcnt(%d)" % (10 - 5 * sl))
        for i in range(5):
            for h2 in range(2):
                k("v_pk_add_f32 %s, %s, %s" % (vr(RD + 4 * i + 2 * h2, 2), vr(RD + 4 * i + 2 * h2, 2), vr(T + (sl * 5 + i) * 4 + 2 * h2, 2)))
    k("s_waitcnt vmcnt(0)")
    O = 128
    for p in range(10):
        a = RD + 2 * p
        t = T + 4 * p
        k("v_cvt_pk_bf16_f32 v%d, v%d, v%d" % (t, a, a + 1))
        k("v_lshlrev_b32 v%d, 16, v%d" % (a, t))
        k("v_and_b32 v%d, 0xffff0000, v%d" % (a + 1, t))
        k("v_lshlrev_b32 v%d, 16, v%d" % (t + 1, HR + p))
        k("v_and_b32 v%d, 0xffff0000, v%d" % (t + 2, HR + p))
        k("v_add_f32 v%d, v%d, v%d" % (a, a, t + 1))
        k("v_add_f32 v%d, v%d, v%d" % (a + 1, a + 1, t + 2))
        k("v_cvt_pk_bf16_f32 v%d, v%d, v%d" % (O + p, a, a + 1))
    k("buffer_store_dwordx4 %s, v10, s[20:23], s43 offen" % vr(O, 4))
    k("buffer_store_dwordx4 %s, v10, s[20:23], s43 offen offset:16" % vr(O + 4, 4))
    k("buffer_store_dwordx2 %s, v10, s[20:23], s43 offen offset:32" % vr(O + 8, 2))
    k.stamp_flush(5)
    k.label("k6_end")
    k("s_endpgm")
    return k, (256, 256, 4 * 35840)


def gen_all():
    return [gen_k5(), gen_k6()]
```
